```python
import torch

def _softmax(x, axis=-1):
    return torch.softmax(x, dim=axis)
def _gelu(x):
    return torch.nn.functional.gelu(x, approximate="tanh")
def _silu(x):
    return torch.nn.functional.silu(x)
def _sigmoid(x):
    return torch.sigmoid(x)
def _layernorm(x, axis=-1, eps=1e-5):
    m = x.mean(dim=axis, keepdim=True)
    v = x.var(dim=axis, keepdim=True, unbiased=False)
    return (x - m) / torch.sqrt(v + eps)
def _scatter_add(tgt, idx, src, axis=0):
    return tgt.clone().index_add_(axis, idx, src)
def _segment_sum(src, seg, n):
    out = torch.zeros((n,) + src.shape[1:], dtype=src.dtype)
    return out.index_add_(0, seg, src)
def _pad(x, pw):
    flat = tuple(v for pair in reversed(pw) for v in pair)
    return torch.nn.functional.pad(x, flat)

kernel_name = 'recurrent_scan__ssm_conv_s4d__dense_activation_mish__prompt'

def setup_inputs():

    _w = (lambda a: (lambda t: t.to(torch.bfloat16) if t.is_floating_point() else t)(torch.as_tensor(a)))
    def _A_setup():
        Bsz, L, D, N = 1, 2048, 448, 256
        return {
            "u": _w((lambda *s: torch.randn(*s, dtype=torch.bfloat16) * 0.05)(Bsz, L, D)),
            "log_A_real": _w((lambda *s: torch.randn(*s, dtype=torch.bfloat16) * 3.2)(D, N) * 0.5),
            "A_imag": _w((lambda *s: torch.randn(*s, dtype=torch.bfloat16) * 0.2)(D, N) * 3.14),
            "C_real": _w((lambda *s: torch.randn(*s, dtype=torch.bfloat16) * 0.8)(D, N) / N ** 0.5),
            "C_imag": _w((lambda *s: torch.randn(*s, dtype=torch.bfloat16) * 0.8)(D, N) / N ** 0.5),
            "log_dt": _w((lambda *s: torch.randn(*s, dtype=torch.bfloat16) * 0.2)(D) * 0.5 - 4.0),
            "D_skip": _w((lambda *s: torch.randn(*s, dtype=torch.bfloat16) * 0.2)(D)),
        }
    _A_in = _A_setup()

    def _B_setup():
        B, S, D, F = 1, 2048, 448, 1792
        return {
            "x": _w((lambda *s: torch.randn(*s, dtype=torch.bfloat16) * 0.05)(B, S, D)),
            "w1": _w((lambda *s: torch.randn(*s, dtype=torch.bfloat16) * 0.8)(D, F) * (D ** -0.5)),
            "b1": _w((lambda *s: torch.randn(*s, dtype=torch.bfloat16) * 0.4)(F)),
            "w2": _w((lambda *s: torch.randn(*s, dtype=torch.bfloat16) * 0.1)(F, D) * (F ** -0.5)),
        }
    _B_in = _B_setup()

    return {
        "A_u": _A_in["u"],
        "A_log_A_real": _A_in["log_A_real"],
        "A_A_imag": _A_in["A_imag"],
        "A_C_real": _A_in["C_real"],
        "A_C_imag": _A_in["C_imag"],
        "A_log_dt": _A_in["log_dt"],
        "A_D_skip": _A_in["D_skip"],
        "B_x": _B_in["x"],
        "B_w1": _B_in["w1"],
        "B_b1": _B_in["b1"],
        "B_w2": _B_in["w2"],
    }

def reference(A_u, A_log_A_real, A_A_imag, A_C_real, A_C_imag, A_log_dt, A_D_skip, B_x, B_w1, B_b1, B_w2):
    def _A_ref(u, log_A_real, A_imag, C_real, C_imag, log_dt, D_skip):
        L = u.shape[1]
        dt = torch.exp(log_dt)
        A = -torch.exp(log_A_real) + 1j * A_imag
        C = (C_real + 1j * C_imag) * dt[:, None]
        pos = (lambda x, dt: x.to(dt))(torch.arange(L), log_dt.dtype)
        P = torch.exp((A * dt[:, None])[:, :, None] * pos[None, None, :])
        K = 2.0 * torch.einsum("dn,dnl->dl", C, P).real
        L2 = 2 * L
        u_t = (lambda x, *d: x.permute(*d))(u, 0, 2, 1)
        Kf = (lambda x, *a, **k: torch.fft.rfft(x.float(), *a, **k))(K, L2)
        Uf = (lambda x, *a, **k: torch.fft.rfft(x.float(), *a, **k))(u_t, L2)
        y = (lambda x, *a, **k: torch.fft.irfft(x, *a, **k).to(torch.bfloat16))(Uf * Kf[None, :, :], L2)[:, :, :L]
        y = (lambda x, *d: x.permute(*d))(y, 0, 2, 1)
        return y + u * D_skip[None, None, :]

    def _B_ref(x, w1, b1, w2):
        h = torch.einsum("bsd,df->bsf", x, w1) + b1
        sp = torch.log1p(torch.exp(-torch.abs(h))) + torch.where(h > 0, h, torch.zeros_like(h))
        act = h * torch.tanh(sp)
        return torch.einsum("bsf,fd->bsd", act, w2)

    x = A_u
    xn = _layernorm(x, axis=-1)
    s = _A_ref(xn, A_log_A_real, A_A_imag, A_C_real, A_C_imag, A_log_dt, A_D_skip)
    g = _silu(_B_ref(xn, B_w1, B_b1, B_w2))
    return x + s * g
```

```python
NAME = "recurrent_scan__ssm_conv_s4d__dense_activation_mish__prompt"
KA = dict(u=0, logA=8, Aim=16, Cre=24, Cim=32, logdt=40, D=48, bx=56, w1=64, b1=72, w2=80, out=88, dbg=96, ws=104)
SZ = dict(u=1835008, logA=229376, Aim=229376, Cre=229376, Cim=229376, logdt=896, D=896, w1=1605632, b1=3584, w2=1605632, out=1835008, dbg=256)
WS_ACT = 0
WS_XNT = 0x800000
WS_ST  = 0xA00000
WS_KC  = 0xC00000
WS_FLAG= 0x1000000
WS_SIZE = 0x1100000

class Asm:
    def __init__(self):
        self.L = []
        self.uid = 0
    def __call__(self, s):
        for line in s.strip("\n").split("\n"):
            self.L.append(line.strip())
    def label(self, base):
        self.uid += 1
        return f"L_{base}_{self.uid}"
    def text(self):
        return "\n".join(self.L) + "\n"
    def srd(self, s, base_lo, nbytes, add=0):
        if add:
            self(f"s_add_u32 s{s}, s{base_lo}, {add}")
            self(f"s_addc_u32 s{s+1}, s{base_lo+1}, 0")
        else:
            self(f"s_mov_b32 s{s}, s{base_lo}")
            self(f"s_mov_b32 s{s+1}, s{base_lo+1}")
        self(f"s_mov_b32 s{s+2}, {nbytes}")
        self(f"s_mov_b32 s{s+3}, 0x20000")

def vr(a, n=1):
    return f"v{a}" if n == 1 else f"v[{a}:{a+n-1}]"
def sr(a, n=1):
    return f"s{a}" if n == 1 else f"s[{a}:{a+n-1}]"

def kernel_header(name):
    return f".globl {name}\n.p2align 8\n.type {name},@function\n{name}:\n"
def kernel_desc(name, vgpr, sgpr=102):
    acc = (vgpr + 3) // 4 * 4
    return f""".p2align 6
.amdhsa_kernel {name}
  .amdhsa_next_free_vgpr {vgpr}
  .amdhsa_next_free_sgpr {sgpr}
  .amdhsa_accum_offset {acc}
  .amdhsa_group_segment_fixed_size 0
  .amdhsa_kernarg_size 112
  .amdhsa_user_sgpr_count 2
  .amdhsa_user_sgpr_kernarg_segment_ptr 1
  .amdhsa_system_sgpr_workgroup_id_x 1
.end_amdhsa_kernel
"""
LOG2E = 0x3fb8aa3b
def f2u(x):
    import struct
    return struct.unpack("<I", struct.pack("<f", x))[0]
```

```python
from asmlib import *

def emit_g1(a, coh="", wg="s2", done=None):
    ACC = 64
    AS = [16, 32]; BS = [48, 52]
    vA = [4, 5, 6, 7]; vB = [8, 9]; vXo = 10; vWo = 11
    vSum, vSq, vCs = 12, 13, 14
    vOnes = 15
    vB1 = 60
    sU, sW1, sACT, sXNT, sBB = 4, 8, 12, 16, 20
    sw, srb, sfs, sCC, sXb, sWb, sM, sT0, sT1 = 24, 25, 26, 27, 28, 29, 30, 31, 32
    a(f"""
    s_load_dwordx2 s[36:37], s[0:1], {KA['u']}
    s_load_dwordx2 s[38:39], s[0:1], {KA['w1']}
    s_load_dwordx2 s[40:41], s[0:1], {KA['b1']}
    s_load_dwordx2 s[42:43], s[0:1], {KA['ws']}
    v_lshrrev_b32 v1, 6, v0
    v_and_b32 v2, 63, v0
    s_and_b32 s{srb}, {wg}, 7
    s_lshr_b32 s{sT0}, {wg}, 3
    v_readfirstlane_b32 s{sw}, v1
    s_cmp_ge_u32 s{sT0}, 14
    s_cselect_b32 s{sT1}, 8, 0
    s_add_u32 s{srb}, s{srb}, s{sT1}
    s_cselect_b32 s{sfs}, s{sT0}, s{sT0}
    s_cmp_ge_u32 s{sT0}, 14
    s_cselect_b32 s{sT1}, 14, 0
    s_sub_u32 s{sfs}, s{sT0}, s{sT1}
    """)
    a(f"""
    v_lshrrev_b32 v3, 2, v2
    v_mul_u32_u24 v{vXo}, 896, v3
    v_and_b32 v56, 3, v2
    v_lshrrev_b32 v57, 4, v2
    v_and_b32 v57, 3, v57
    v_xor_b32 v58, v56, v57
    v_lshl_add_u32 v{vXo}, v58, 4, v{vXo}
    v_lshrrev_b32 v58, 4, v2
    v_mul_u32_u24 v{vWo}, 3584, v58
    v_lshrrev_b32 v59, 2, v2
    v_and_b32 v59, 3, v59
    v_xor_b32 v59, v59, v57
    v_lshl_add_u32 v{vWo}, v59, 6, v{vWo}
    v_lshl_add_u32 v{vWo}, v56, 4, v{vWo}
    s_waitcnt lgkmcnt(0)
    """)
    a.srd(sU, 36, SZ['u']); a.srd(sW1, 38, SZ['w1']); a.srd(sBB, 40, SZ['b1'])
    a.srd(sACT, 42, 7340032, WS_ACT); a.srd(sXNT, 42, 1835008, WS_XNT)
    a(f"""
    s_mul_i32 s{sXb}, s{srb}, 114688
    s_mul_i32 s{sT0}, s{sw}, 28672
    s_add_u32 s{sXb}, s{sXb}, s{sT0}
    s_mul_i32 s{sWb}, s{sw}, 28672
    s_lshl_b32 s{sT0}, s{sfs}, 8
    s_add_u32 s{sWb}, s{sWb}, s{sT0}
    s_lshl_b32 s{sM}, s{sw}, 11
    s_add_u32 s{sCC}, s{sfs}, 1
    s_cmp_eq_u32 s{sCC}, 14
    s_cselect_b32 s{sCC}, 0, s{sCC}
    """)
    def dma(stage):
        a(f"""
        s_lshl_b32 s{sT0}, s{sCC}, 6
        s_add_u32 s{sT0}, s{sT0}, s{sXb}
        s_add_u32 m0, s{sM}, {stage*16384}
        s_mul_i32 s{sT1}, s{sCC}, 114688
        buffer_load_dwordx4 v{vXo}, s[{sU}:{sU+3}], s{sT0} offen lds
        s_add_u32 m0, s{sM}, {stage*16384+1024}
        s_add_u32 s{sT0}, s{sT0}, 14336
        buffer_load_dwordx4 v{vXo}, s[{sU}:{sU+3}], s{sT0} offen lds
        s_add_u32 m0, s{sM}, {stage*16384+8192}
        s_add_u32 s{sT1}, s{sT1}, s{sWb}
        buffer_load_dwordx4 v{vWo}, s[{sW1}:{sW1+3}], s{sT1} offen lds
        s_add_u32 m0, s{sM}, {stage*16384+8192+1024}
        s_add_u32 s{sT1}, s{sT1}, 14336
        buffer_load_dwordx4 v{vWo}, s[{sW1}:{sW1+3}], s{sT1} offen lds
        s_add_u32 s{sCC}, s{sCC}, 1
        s_cmp_eq_u32 s{sCC}, 14
        s_cselect_b32 s{sCC}, 0, s{sCC}
        """)
    a(f"""
    v_and_b32 v56, 31, v2
    v_lshlrev_b32 v56, 1, v56
    s_lshl_b32 s{sT0}, s{sfs}, 8
    """)
    for j in range(4):
        a(f"""
        s_add_u32 s{sT1}, s{sw}, {j}
        s_and_b32 s{sT1}, s{sT1}, 3
        s_lshl_b32 s{sT1}, s{sT1}, 6
        s_add_u32 s{sT1}, s{sT1}, s{sT0}
        buffer_load_ushort v{vB1+j}, v56, s[{sBB}:{sBB+3}], s{sT1} offen
        """)
    for c in range(3): dma(c)
    a(f"""
    v_and_b32 v56, 31, v2
    v_lshrrev_b32 v57, 5, v2
    v_lshrrev_b32 v58, 2, v56
    v_and_b32 v58, 3, v58
    v_xor_b32 v58, v58, v57
    v_lshlrev_b32 v58, 4, v58
    v_lshl_add_u32 v58, v56, 6, v58
    s_lshl_b32 s{sT0}, s{sw}, 11
    v_add_u32 v{vB[0]}, s{sT0}, v58
    v_xor_b32 v{vB[1]}, 32, v{vB[0]}
    v_and_b32 v56, 15, v2
    v_lshrrev_b32 v58, 2, v56
    v_and_b32 v59, 3, v56
    v_lshl_add_u32 v1, v57, 3, v58
    v_lshlrev_b32 v1, 8, v1
    v_lshl_add_u32 v1, v59, 3, v1
    v_lshrrev_b32 v3, 4, v2
    v_and_b32 v3, 1, v3
    v_lshl_add_u32 v1, v3, 5, v1
    """)
    for j in range(4):
        a(f"""
        s_add_u32 s{sT1}, s{sw}, {j}
        s_and_b32 s{sT1}, s{sT1}, 3
        v_xor_b32 v3, s{sT1}, v58
        v_lshl_add_u32 v{vA[j]}, v3, 6, v1
        """)
    a(f"v_mov_b32 v{vSum}, 0\nv_mov_b32 v{vSq}, 0\nv_mov_b32 v{vCs}, 0\nv_mov_b32 v{vOnes}, 0x3f803f80")
    for i in range(64): a(f"v_mov_b32 v{ACC+i}, 0")
    def reads(sig):
        c, s = sig // 2, sig % 2
        st = (c % 4) * 16384
        A = AS[sig % 2]; B = BS[sig % 2]
        a(f"ds_read_b128 v[{B}:{B+3}], v{vB[s]} offset:{st}")
        for j in range(4):
            for q in range(2):
                a(f"ds_read_b64_tr_b16 v[{A+4*j+2*q}:{A+4*j+2*q+1}], v{vA[j]} offset:{st+8192+s*4096+q*1024}")
    def compute(sig):
        A = AS[sig % 2]; B = BS[sig % 2]
        for j in range(4):
            a(f"v_mfma_f32_32x32x16_bf16 v[{ACC+16*j}:{ACC+16*j+15}], v[{A+4*j}:{A+4*j+3}], v[{B}:{B+3}], v[{ACC+16*j}:{ACC+16*j+15}]")
            a(f"v_dot2c_f32_bf16 v{vSum}, v{B+j}, v{vOnes}")
            a(f"v_dot2c_f32_bf16 v{vSq}, v{B+j}, v{B+j}")
            a(f"v_dot2c_f32_bf16 v{vCs}, v{A+j}, v{vOnes}")
    a("s_waitcnt vmcnt(8)\ns_barrier")
    dma(3)
    reads(0)
    for sig in range(28):
        nxt = sig + 1
        if nxt < 28:
            if nxt % 2 == 0:
                c = nxt // 2
                outstanding_after = min(13, c + 2) - c
                a(f"s_waitcnt vmcnt({4*outstanding_after}) lgkmcnt(0)\ns_barrier")
                if c + 3 < 14: dma((c + 3) % 4)
                reads(nxt)
            else:
                reads(nxt)
                a("s_waitcnt lgkmcnt(9)")
        else:
            a("s_waitcnt lgkmcnt(0)")
        compute(sig)
    a(f"""
    s_nop 3
    v_mov_b32 v56, v{vSum}
    v_mov_b32 v57, v{vSq}
    v_mov_b32 v58, v{vCs}
    s_nop 1
    v_permlane32_swap_b32 v{vSum}, v56
    v_permlane32_swap_b32 v{vSq}, v57
    v_permlane32_swap_b32 v{vCs}, v58
    s_nop 1
    v_add_f32 v{vSum}, v{vSum}, v56
    v_add_f32 v{vSq}, v{vSq}, v57
    v_add_f32 v{vCs}, v{vCs}, v58
    v_and_b32 v56, 31, v2
    v_lshlrev_b32 v56, 2, v56
    s_lshl_b32 s{sT0}, s{sw}, 7
    s_add_u32 s{sT0}, s{sT0}, 65536
    v_add_u32 v56, s{sT0}, v56
    ds_write_b32 v56, v{vCs}
    v_mul_f32 v{vSum}, {f2u(1.0/448)}, v{vSum}
    v_mul_f32 v{vSq}, {f2u(1.0/448)}, v{vSq}
    v_fma_f32 v{vSq}, -v{vSum}, v{vSum}, v{vSq}
    v_max_f32 v{vSq}, 0, v{vSq}
    v_cvt_pk_bf16_f32 v57, v{vSum}, v{vSq}
    v_and_b32 v58, 0xffff0000, v57
    v_lshlrev_b32 v{vSum}, 16, v57
    v_add_f32 v58, {f2u(1e-5)}, v58
    v_cvt_pk_bf16_f32 v58, v58, v58
    v_and_b32 v58, 0xffff0000, v58
    v_sqrt_f32 v58, v58
    s_nop 0
    v_cvt_pk_bf16_f32 v58, v58, v58
    v_and_b32 v{vSq}, 0xffff0000, v58
    v_rcp_f32 v{vCs}, v{vSq}
    s_waitcnt lgkmcnt(0)
    s_barrier
    """)
    vM, vDen, vR = vSum, vSq, vCs
    a(f"v_and_b32 v56, 31, v2\nv_lshlrev_b32 v56, 2, v56")
    for j in range(4):
        a(f"""
        s_add_u32 s{sT1}, s{sw}, {j}
        s_and_b32 s{sT1}, s{sT1}, 3
        s_lshl_b32 s{sT1}, s{sT1}, 7
        s_add_u32 s{sT1}, s{sT1}, 65536
        v_add_u32 v57, s{sT1}, v56
        ds_read_b32 v{16+4*j}, v57
        """)
    a(f"""
    v_lshrrev_b32 v57, 5, v2
    v_mul_u32_u24 v57, {8*272}, v57
    v_and_b32 v58, 31, v2
    v_lshl_add_u32 v57, v58, 1, v57
    s_lshl_b32 s{sT0}, s{sw}, 6
    v_add_u32 v57, s{sT0}, v57
    """)
    for s in range(2):
        for i in range(4):
            src = BS[s] + i
            a(f"""
            v_lshlrev_b32 v32, 16, v{src}
            v_and_b32 v33, 0xffff0000, v{src}
            v_sub_f32 v32, v32, v{vM}
            v_sub_f32 v33, v33, v{vM}
            v_cvt_pk_bf16_f32 v34, v32, v33
            v_lshlrev_b32 v32, 16, v34
            v_and_b32 v33, 0xffff0000, v34
            v_mul_f32 v32, v32, v{vR}
            v_mul_f32 v33, v33, v{vR}
            v_cvt_pk_bf16_f32 v{36+4*s+i}, v32, v33
            """)
            a(f"ds_write_b16 v57, v{36+4*s+i} offset:{(16*s+2*i)*272}")
            a(f"ds_write_b16_d16_hi v57, v{36+4*s+i} offset:{(16*s+2*i+1)*272}")
    a(f"""
    v_sub_f32 v32, 0, v{vM}
    v_cvt_pk_bf16_f32 v48, v32, v32
    v_lshrrev_b32 v49, 16, v{vDen}
    v_mov_b32 v50, 0
    v_mov_b32 v51, 0
    v_cmp_gt_u32 vcc, 32, v2
    s_nop 1
    v_cndmask_b32 v48, 0, v48, vcc
    v_cndmask_b32 v49, 0, v49, vcc
    s_waitcnt lgkmcnt(16)
    """.replace("lgkmcnt(16)", "lgkmcnt(0)"))
    for j in range(4):
        A = 16 + 4 * j
        a(f"""
        v_cvt_pk_bf16_f32 v32, v{A}, v{A}
        v_lshlrev_b32 v32, 16, v32
        v_sub_f32 v33, v{A}, v32
        v_cvt_pk_bf16_f32 v{A}, v32, v33
        v_mov_b32 v{A+1}, v{vB1+j}
        v_mov_b32 v{A+2}, 0
        v_mov_b32 v{A+3}, 0
        """)
    a("s_nop 1")
    for j in range(4):
        A = 16 + 4 * j
        a(f"v_mfma_f32_32x32x16_bf16 v[{ACC+16*j}:{ACC+16*j+15}], v[{A}:{A+3}], v[48:51], v[{ACC+16*j}:{ACC+16*j+15}]")
    a(f"""
    s_waitcnt lgkmcnt(0)
    s_barrier
    v_lshrrev_b32 v56, 4, v0
    v_and_b32 v57, 15, v0
    v_mul_u32_u24 v58, 272, v56
    v_lshl_add_u32 v58, v57, 4, v58
    ds_read_b128 v[32:35], v58
    ds_read_b128 v[36:39], v58 offset:{16*272}
    v_lshlrev_b32 v56, 12, v56
    v_lshl_add_u32 v56, v57, 4, v56
    s_lshl_b32 s{sT0}, s{sfs}, 17
    s_lshl_b32 s{sT1}, s{srb}, 8
    s_add_u32 s{sT0}, s{sT0}, s{sT1}
    s_add_u32 s{sT1}, s{sT0}, 65536
    v_mul_f32 v59, {LOG2E}, v{vR}
    v_mul_f32 v3, -2.0, v{vR}
    v_lshlrev_b32 v1, 4, v2
    s_waitcnt lgkmcnt(1)
    buffer_store_dwordx4 v[32:35], v56, s[{sXNT}:{sXNT+3}], s{sT0} offen {coh}
    s_waitcnt lgkmcnt(0)
    buffer_store_dwordx4 v[36:39], v56, s[{sXNT}:{sXNT+3}], s{sT1} offen {coh}
    """)
    a(f"""
    s_lshl_b32 s{sT0}, s{srb}, 2
    s_add_u32 s{sT0}, s{sT0}, s{sw}
    s_mul_i32 s{sT0}, s{sT0}, 112
    s_lshl_b32 s{sT1}, s{sfs}, 3
    s_add_u32 s{sT0}, s{sT0}, s{sT1}
    s_lshl_b32 s33, s{sT0}, 10
    """)
    Y = 16; T = 24
    for j in range(4):
        a(f"""
        s_add_u32 s{sT1}, s{sw}, {j}
        s_and_b32 s{sT1}, s{sT1}, 3
        s_lshl_b32 s{sT1}, s{sT1}, 11
        s_add_u32 s34, s33, s{sT1}
        """)
        for half in range(2):
            base = ACC + 16 * j + 8 * half
            F = 40 + 4 * half
            for e in range(8): a(f"v_mul_f32 v{Y+e}, v{base+e}, v59")
            for e in range(8): a(f"v_exp_f32 v{Y+e}, v{Y+e}")
            for e in range(8): a(f"v_add_f32 v{T+e}, 2.0, v{Y+e}")
            for e in range(8): a(f"v_fma_f32 v{T+e}, v{Y+e}, v{T+e}, 2.0")
            for e in range(8): a(f"v_rcp_f32 v{T+e}, v{T+e}")
            for e in range(8): a(f"v_fma_f32 v{T+e}, v{T+e}, v3, v{vR}")
            for e in range(8): a(f"v_mul_f32 v{T+e}, v{base+e}, v{T+e}")
            for e in range(4): a(f"v_cvt_pk_bf16_f32 v{F+e}, v{T+2*e}, v{T+2*e+1}")
            a(f"buffer_store_dwordx4 v[{F}:{F+3}], v1, s[{sACT}:{sACT+3}], s34 offen offset:{half*1024} {coh}")
    if done: done(a)
```

```python
from asmlib import *

def emit_g2_setup(a, wg="s2"):
    sw, srb, stb, sdb, sT0, sT1 = 24, 25, 26, 27, 31, 32
    a(f"""
    s_load_dwordx2 s[36:37], s[0:1], {KA['u']}
    s_load_dwordx2 s[38:39], s[0:1], {KA['w2']}
    s_load_dwordx2 s[40:41], s[0:1], {KA['out']}
    s_load_dwordx2 s[42:43], s[0:1], {KA['ws']}
    v_lshrrev_b32 v1, 6, v0
    v_and_b32 v2, 63, v0
    s_and_b32 s{srb}, {wg}, 7
    s_lshr_b32 s{sT0}, {wg}, 3
    v_readfirstlane_b32 s{sw}, v1
    s_cmp_ge_u32 s{sT0}, 14
    s_cselect_b32 s{sT1}, 8, 0
    s_add_u32 s{srb}, s{srb}, s{sT1}
    s_cmp_ge_u32 s{sT0}, 14
    s_cselect_b32 s{sT1}, 14, 0
    s_sub_u32 s{sT0}, s{sT0}, s{sT1}
    s_cmp_ge_u32 s{sT0}, 7
    s_cselect_b32 s{sT1}, 1, 0
    s_lshl_b32 s{stb}, s{srb}, 1
    s_add_u32 s{stb}, s{stb}, s{sT1}
    s_mul_i32 s{sT1}, s{sT1}, 7
    s_sub_u32 s{sdb}, s{sT0}, s{sT1}
    s_waitcnt lgkmcnt(0)
    """)
    a.srd(4, 36, SZ['u']); a.srd(8, 38, SZ['w2']); a.srd(12, 42, 7340032, WS_ACT); a.srd(16, 42, 1835008, WS_ST); a.srd(20, 40, SZ['out'])

def emit_g2(a, coh="", wait_act=None, wait_st=None):
    sw, stb, sdb, sT0, sT1 = 24, 26, 27, 31, 32
    ACC = 64
    ACT = 128
    AF = [16, 24]
    vWo, vAo, vA0, vA1 = 4, 5, 6, 7
    NS = 8; P = 7
    sAo0, sAo1, sWo, sM = 28, 29, 30, 33
    a(f"""
    v_lshrrev_b32 v8, 3, v2
    v_mul_u32_u24 v{vWo}, 896, v8
    v_lshrrev_b32 v9, 2, v2
    v_and_b32 v9, 1, v9
    v_lshrrev_b32 v10, 4, v2
    v_and_b32 v10, 1, v10
    v_xor_b32 v9, v9, v10
    v_lshl_add_u32 v{vWo}, v9, 6, v{vWo}
    v_and_b32 v9, 3, v2
    v_lshl_add_u32 v{vWo}, v9, 4, v{vWo}
    v_lshlrev_b32 v{vAo}, 4, v2
    s_lshl_b32 s{sT0}, s{stb}, 1
    s_mul_i32 s{sT0}, s{sT0}, 112
    s_mul_i32 s{sT1}, s{sw}, 28
    s_add_u32 s{sT0}, s{sT0}, s{sT1}
    s_lshl_b32 s{sAo0}, s{sT0}, 10
    s_add_u32 s{sAo1}, s{sAo0}, {112*1024}
    s_mul_i32 s{sWo}, s{sT1}, {16*896}
    s_lshl_b32 s{sT0}, s{sdb}, 7
    s_add_u32 s{sWo}, s{sWo}, s{sT0}
    s_lshl_b32 s{sM}, s{sw}, 14
    """)
    a(f"""
    v_and_b32 v8, 15, v2
    v_lshrrev_b32 v9, 2, v8
    v_and_b32 v10, 3, v8
    v_lshrrev_b32 v11, 5, v2
    v_lshl_add_u32 v11, v11, 2, v9
    v_lshlrev_b32 v11, 7, v11
    v_lshl_add_u32 v11, v10, 3, v11
    v_lshrrev_b32 v12, 4, v2
    v_and_b32 v12, 1, v12
    v_lshl_add_u32 v11, v12, 5, v11
    v_lshrrev_b32 v9, 1, v9
    v_lshl_add_u32 v{vA0}, v9, 6, v11
    v_xor_b32 v9, 1, v9
    v_lshl_add_u32 v{vA1}, v9, 6, v11
    v_add_u32 v{vA0}, s{sM}, v{vA0}
    v_add_u32 v{vA1}, s{sM}, v{vA1}
    """)
    def wload(k):
        slot = k % NS
        a(f"""
        s_add_u32 m0, s{sM}, {slot*2048}
        s_add_u32 s{sT0}, s{sWo}, {k*16*896}
        buffer_load_dwordx4 v{vWo}, s[8:11], s{sT0} offen lds
        s_add_u32 m0, s{sM}, {slot*2048+1024}
        s_add_u32 s{sT0}, s{sT0}, {8*896}
        buffer_load_dwordx4 v{vWo}, s[8:11], s{sT0} offen lds
        """)
    def aload(k):
        slot = k % NS
        R = ACT + 8 * slot
        a(f"""
        s_add_u32 s{sT0}, s{sAo0}, {k*1024}
        s_add_u32 s{sT1}, s{sAo1}, {k*1024}
        buffer_load_dwordx4 v[{R}:{R+3}], v{vAo}, s[12:15], s{sT0} offen {coh}
        buffer_load_dwordx4 v[{R+4}:{R+7}], v{vAo}, s[12:15], s{sT1} offen {coh}
        """)
    for k in range(P): wload(k)
    for i in range(64): a(f"v_mov_b32 v{ACC+i}, 0")
    if wait_act: wait_act(a)
    for k in range(P): aload(k)
    def reads(k):
        slot = k % NS; F = AF[k % 2]
        for dt, va in ((0, vA0), (1, vA1)):
            for q in range(2):
                a(f"ds_read_b64_tr_b16 v[{F+4*dt+2*q}:{F+4*dt+2*q+1}], v{va} offset:{slot*2048+q*1024}")
    def outstanding_after(k):
        if k < P: return 2 * (P - 1 - k) + 4 * min(k, 28 - P)
        return 4 * (min(k + P, 28) - 1 - k)
    a(f"s_waitcnt vmcnt({outstanding_after(0)})")
    reads(0)
    for k in range(28):
        if k + 1 < 28:
            pass
        if k + P < 28:
            pass
        if k + 1 < 28:
            if k + 1 < P:
                n = 2 * (P - 1 - (k + 1)) + 4 * min(k, 28 - P)
            else:
                n = 4 * (min(k - 1 + P, 27) - (k + 1))
            a(f"s_waitcnt vmcnt({n})")
            reads(k + 1)
            a("s_waitcnt lgkmcnt(4)")
        else:
            a("s_waitcnt lgkmcnt(0)")
        if k + P < 28:
            wload(k + P)
        F = AF[k % 2]; R = ACT + 8 * (k % NS)
        for dt in range(2):
            for tt in range(2):
                D = ACC + 16 * (2 * dt + tt)
                a(f"v_mfma_f32_32x32x16_bf16 v[{D}:{D+15}], v[{F+4*dt}:{F+4*dt+3}], v[{R+4*tt}:{R+4*tt+3}], v[{D}:{D+15}]")
        if k + P < 28:
            aload(k + P)
    a("s_nop 15\ns_barrier")
    a(f"""
    v_and_b32 v8, 31, v2
    v_lshrrev_b32 v9, 5, v2
    v_mul_u32_u24 v8, 272, v8
    v_lshl_add_u32 v8, v9, 4, v8
    s_mul_i32 s{sT0}, s{sw}, 17408
    v_add_u32 v8, s{sT0}, v8
    """)
    for dt in range(2):
        for tt in range(2):
            D = ACC + 16 * (2 * dt + tt)
            for j in range(4):
                a(f"ds_write_b128 v8, v[{D+4*j}:{D+4*j+3}] offset:{tt*32*272 + dt*128 + j*32}")
    if wait_st: wait_st(a)
    LST = 69632
    a(f"""
    v_lshrrev_b32 v9, 2, v0
    v_and_b32 v10, 3, v0
    v_lshlrev_b32 v11, 12, v9
    v_lshl_add_u32 v11, v10, 5, v11
    s_lshl_b32 s{sT0}, s{sdb}, 18
    s_lshl_b32 s{sT1}, s{stb}, 7
    s_add_u32 s{sT0}, s{sT0}, s{sT1}
    buffer_load_dwordx4 v[16:19], v11, s[16:19], s{sT0} offen {coh}
    buffer_load_dwordx4 v[20:23], v11, s[16:19], s{sT0} offen offset:16 {coh}
    v_lshrrev_b32 v12, 3, v0
    v_and_b32 v13, 7, v0
    v_mul_u32_u24 v14, 896, v12
    v_lshl_add_u32 v14, v13, 4, v14
    s_mul_i32 s{sT0}, s{stb}, {64*896}
    s_lshl_b32 s{sT1}, s{sdb}, 7
    s_add_u32 s34, s{sT0}, s{sT1}
    s_add_u32 s35, s34, {32*896}
    buffer_load_dwordx4 v[24:27], v14, s[4:7], s34 offen
    buffer_load_dwordx4 v[28:31], v14, s[4:7], s35 offen
    v_mul_u32_u24 v9, 144, v9
    v_lshl_add_u32 v9, v10, 5, v9
    v_add_u32 v9, {LST}, v9
    s_waitcnt vmcnt(2)
    ds_write_b128 v9, v[16:19]
    ds_write_b128 v9, v[20:23] offset:16
    s_waitcnt lgkmcnt(0)
    s_barrier
    """)
    a(f"""
    v_mul_u32_u24 v9, 272, v12
    v_lshl_add_u32 v9, v13, 5, v9
    v_mul_u32_u24 v10, {8*144}, v13
    v_lshl_add_u32 v10, v12, 1, v10
    v_add_u32 v10, {LST}, v10
    """)
    for p in range(2):
        G = 64
        for w in range(4):
            a(f"ds_read_b128 v[{G+8*w}:{G+8*w+3}], v9 offset:{w*17408 + p*32*272}")
            a(f"ds_read_b128 v[{G+8*w+4}:{G+8*w+7}], v9 offset:{w*17408 + p*32*272 + 16}")
        for e in range(8):
            a(f"ds_read_u16 v{96+e}, v10 offset:{e*144 + p*64}")
        a("s_waitcnt lgkmcnt(0)")
        for e in range(8):
            a(f"v_add_f32 v{G+e}, v{G+e}, v{G+8+e}\nv_add_f32 v{G+16+e}, v{G+16+e}, v{G+24+e}")
        for e in range(8):
            a(f"v_add_f32 v{G+e}, v{G+e}, v{G+16+e}")
        for e in range(0, 8, 2):
            a(f"v_cvt_pk_bf16_f32 v{72+e}, v{G+e}, v{G+e+1}")
            a(f"v_lshlrev_b32 v{G+e}, 16, v{72+e}\nv_and_b32 v{G+e+1}, 0xffff0000, v{72+e}")
        for e in range(8): a(f"v_mul_f32 v{72+e}, {f2u(-1.4426950408889634)}, v{G+e}")
        for e in range(8): a(f"v_exp_f32 v{72+e}, v{72+e}")
        for e in range(8): a(f"v_add_f32 v{72+e}, 1.0, v{72+e}")
        for e in range(8): a(f"v_rcp_f32 v{72+e}, v{72+e}")
        for e in range(8): a(f"v_mul_f32 v{G+e}, v{G+e}, v{72+e}")
        for e in range(0, 8, 2):
            a(f"v_cvt_pk_bf16_f32 v{72+e}, v{G+e}, v{G+e+1}")
            a(f"v_lshlrev_b32 v{G+e}, 16, v{72+e}\nv_and_b32 v{G+e+1}, 0xffff0000, v{72+e}")
        for e in range(8): a(f"v_lshlrev_b32 v{96+e}, 16, v{96+e}\nv_mul_f32 v{G+e}, v{G+e}, v{96+e}")
        if p == 0: a("s_waitcnt vmcnt(1)")
        else: a("s_waitcnt vmcnt(1)")
        X = 24 + 4 * p
        for e in range(0, 8, 2):
            a(f"v_cvt_pk_bf16_f32 v{72+e}, v{G+e}, v{G+e+1}")
            a(f"v_lshlrev_b32 v{G+e}, 16, v{72+e}\nv_and_b32 v{G+e+1}, 0xffff0000, v{72+e}")
            a(f"v_lshlrev_b32 v{80+e}, 16, v{X+e//2}\nv_and_b32 v{81+e}, 0xffff0000, v{X+e//2}")
            a(f"v_add_f32 v{G+e}, v{G+e}, v{80+e}\nv_add_f32 v{G+e+1}, v{G+e+1}, v{81+e}")
            a(f"v_cvt_pk_bf16_f32 v{104+4*p+e//2}, v{G+e}, v{G+e+1}")
        a(f"buffer_store_dwordx4 v[{104+4*p}:{107+4*p}], v14, s[20:23], s{34+p} offen")
```

```python
from asmlib import *
GEN_STRIDE = 264
GEN_W = 53 * GEN_STRIDE
L_GEN = 0
L_T = 4096
L_CP = 4 * GEN_W
CPS = 4160
L_XS = L_CP + 4 * CPS
L_END = L_XS + 2 * 4608
ZADDR = 8192 + 128
LN2 = 0.6931471805599453
LOG2E_LO = 1.925963033500011e-08

def cmul(a, dr, di, xr, xi, wr, wi, nwi):
    a(f"v_mul_f32 v{dr}, v{xr}, v{wr}")
    a(f"v_mul_f32 v{di}, v{xr}, v{wi}")
    a(f"v_fmac_f32 v{dr}, v{xi}, v{nwi}")
    a(f"v_fmac_f32 v{di}, v{xi}, v{wr}")

def exp_bf16r(a, dst, src, t0, t1):
    a(f"""
    v_mul_f32 v{t0}, {LOG2E}, v{src}
    v_fma_f32 v{t1}, v{src}, s60, -v{t0}
    v_fmac_f32 v{t1}, {f2u(LOG2E_LO)}, v{src}
    v_exp_f32 v{t0}, v{t0}
    v_mul_f32 v{t1}, {f2u(LN2)}, v{t1}
    v_fmac_f32 v{t0}, v{t0}, v{t1}
    v_cvt_pk_bf16_f32 v{t0}, v{t0}, v{t0}
    v_and_b32 v{dst}, 0xffff0000, v{t0}
    """)

def emit_kg_setup(a, wg="s2"):
    a(f"""
    s_load_dwordx4 s[36:39], s[0:1], {KA['logA']}
    s_load_dwordx4 s[40:43], s[0:1], {KA['Cre']}
    s_load_dwordx4 s[44:47], s[0:1], {KA['logdt']}
    s_load_dwordx2 s[48:49], s[0:1], {KA['ws']}
    v_lshrrev_b32 v1, 6, v0
    v_and_b32 v2, 63, v0
    s_mov_b32 s25, {wg}
    s_mov_b32 s60, {LOG2E}
    v_readfirstlane_b32 s24, v1
    v_lshlrev_b32 v3, 1, v0
    s_waitcnt lgkmcnt(0)
    """)
    a.srd(4, 36, SZ['logA']); a.srd(8, 38, SZ['Aim']); a.srd(12, 40, SZ['Cre']); a.srd(16, 42, SZ['Cim'])
    a.srd(20, 44, SZ['logdt']); a.srd(28, 46, SZ['D'])
    a(f"s_lshl_b32 s26, s25, 10\ns_lshl_b32 s27, s25, 2\nv_mov_b32 v4, 0")
    for c in range(2):
        b = 8 + 8 * c
        a(f"""
        s_add_u32 s50, s26, {512*c}
        s_add_u32 s51, s27, {2*c}
        buffer_load_ushort v{b}, v3, s[4:7], s50 offen
        buffer_load_ushort v{b+1}, v3, s[8:11], s50 offen
        buffer_load_ushort v{b+2}, v3, s[12:15], s50 offen
        buffer_load_ushort v{b+3}, v3, s[16:19], s50 offen
        buffer_load_ushort v{b+4}, v4, s[20:23], s51 offen
        buffer_load_ushort v{b+5}, v4, s[28:31], s51 offen
        """)
    for st in range(2):
        for k in range(9):
            d = 24 + 9 * st + k
            a(f"""
            v_lshlrev_b32 v5, 3, v0
            v_sub_u32 v5, {2049 - k - 2048*st}, v5
            v_cmp_gt_i32 vcc, 0, v5
            v_min_i32 v5, 2047, v5
            v_max_i32 v5, 0, v5
            v_cvt_f32_u32 v6, v5
            v_cvt_pk_bf16_f32 v6, v6, v6
            v_lshlrev_b32 v6, 16, v6
            v_cvt_u32_f32 v6, v6
            v_lshrrev_b32 v7, 8, v6
            v_lshlrev_b32 v7, 10, v7
            v_and_b32 v5, 7, v6
            v_lshl_add_u32 v7, v5, 7, v7
            v_bfe_u32 v5, v6, 3, 5
            v_lshl_add_u32 v7, v5, 2, v7
            v_mov_b32 v5, {ZADDR}
            v_cndmask_b32 v7, v7, v5, vcc
            v_add_u32 v{d}, {L_T}, v7
            """)

def emit_kg_channel(a, c):
    b = 8 + 8 * c
    A2, TH, DT2 = 42, 43, 44
    W1, W8, W256 = 46, 50, 54
    t0, t1, t2 = 58, 59, 60
    U = 64
    P0, P1 = 72, 74
    PK = 76
    vW = 45
    if c == 0:
        a("s_waitcnt vmcnt(6)")
    else:
        a("s_waitcnt vmcnt(0)")
    for k in range(6): a(f"v_lshlrev_b32 v{b+k}, 16, v{b+k}")
    exp_bf16r(a, DT2, b + 4, t0, t1)
    exp_bf16r(a, A2, b, t0, t1)
    a(f"""
    v_mul_f32 v{A2}, v{A2}, v{DT2}
    v_mul_f32 v{TH}, v{b+1}, v{DT2}
    v_mul_f32 v{A2}, {f2u(-1.4426950408889634)}, v{A2}
    v_mul_f32 v{TH}, 0.15915494, v{TH}
    v_add_f32 v{DT2}, v{DT2}, v{DT2}
    s_mul_i32 s50, s24, {GEN_W}
    v_lshlrev_b32 v{vW}, 2, v2
    v_add_u32 v{vW}, s50, v{vW}
    """)
    for (W, p) in ((W1, 1.0), (W8, 8.0), (W256, 256.0)):
        a(f"""
        v_mul_f32 v{t0}, {f2u(p)}, v{A2}
        v_mul_f32 v{t1}, {f2u(p)}, v{TH}
        v_exp_f32 v{t0}, v{t0}
        v_fract_f32 v{t1}, v{t1}
        s_nop 0
        v_cos_f32 v{t2}, v{t1}
        v_sin_f32 v{t1}, v{t1}
        s_nop 0
        v_mul_f32 v{W}, v{t0}, v{t2}
        v_mul_f32 v{W+1}, v{t0}, v{t1}
        v_sub_f32 v{W+2}, 0, v{W+1}
        """)
    def put(row, r, i):
        a(f"v_cvt_pk_bf16_f32 v{PK + (row % 4)}, v{r}, v{i}")
        a(f"ds_write_b32 v{vW}, v{PK + (row % 4)} offset:{row*GEN_STRIDE}")
    def xm(dr, di, xr, xi, W):
        cmul(a, dr, di, xr, xi, W, W + 2, W + 1)
    def ym(dr, di, xr, xi, W):
        cmul(a, dr, di, xr, xi, W, W + 1, W + 2)
    a(f"v_mov_b32 v{U}, v{b+2}\nv_sub_f32 v{U+1}, 0, v{b+3}")
    put(0, U, U + 1)
    cur = (U, U + 1)
    for j in range(1, 8):
        dst = (U + j, U + j + 1) if j % 2 == 0 else (P0, P0 + 1)
        xm(dst[0], dst[1], cur[0], cur[1], W1)
        put(j, dst[0], dst[1]); cur = dst
    R8, R10, RA, RB = 80, 82, 84, 86
    xm(R8, R8 + 1, U, U + 1, W256); put(8, R8, R8 + 1)
    xm(RA, RA + 1, U + 2, U + 3, W256); put(9, RA, RA + 1)
    xm(R10, R10 + 1, U + 4, U + 5, W256); put(10, R10, R10 + 1)
    xm(RA, RA + 1, U + 6, U + 7, W256); put(11, RA, RA + 1)
    xm(RA, RA + 1, R8, R8 + 1, W256); put(12, RA, RA + 1)
    xm(RB, RB + 1, R10, R10 + 1, W256); put(13, RB, RB + 1)
    xm(R8, R8 + 1, RA, RA + 1, W256); put(14, R8, R8 + 1)
    xm(R10, R10 + 1, RB, RB + 1, W256); put(15, R10, R10 + 1)
    cur = R8
    for row in range(16, 21):
        dst = RA if cur == R8 else R8
        xm(dst, dst + 1, cur, cur + 1, W256); put(row, dst, dst + 1); cur = dst
    a(f"v_mov_b32 v{P1}, 1.0\nv_mov_b32 v{P1+1}, 0")
    put(21, P1, P1 + 1)
    put(22, W8, W8 + 1)
    cur = W8
    for cidx in range(2, 32):
        dst = P0 if cur != P0 else P1
        ym(dst, dst + 1, cur, cur + 1, W8); put(21 + cidx, dst, dst + 1); cur = dst
    ACC = 88
    FA, FB = 104, 112
    a(f"""
    v_and_b32 v{t0}, 31, v2
    v_lshrrev_b32 v{t1}, 5, v2
    v_lshlrev_b32 v{t1}, 4, v{t1}
    v_add_u32 v{t1}, s50, v{t1}
    v_min_u32 v{t2}, 20, v{t0}
    v_mul_u32_u24 v{t2}, {GEN_STRIDE}, v{t2}
    v_add_u32 v{t2}, v{t2}, v{t1}
    v_mul_u32_u24 v{t0}, {GEN_STRIDE}, v{t0}
    v_add_u32 v{t0}, v{t0}, v{t1}
    """)
    for i in range(16): a(f"v_mov_b32 v{ACC+i}, 0")
    a("s_waitcnt lgkmcnt(0)")
    def rd(s):
        fa = FA + 4 * (s % 2); fb = FB + 4 * (s % 2)
        a(f"ds_read_b64 v[{fa}:{fa+1}], v{t2} offset:{32*s}")
        a(f"ds_read_b64 v[{fa+2}:{fa+3}], v{t2} offset:{32*s+8}")
        a(f"ds_read_b64 v[{fb}:{fb+1}], v{t0} offset:{21*GEN_STRIDE+32*s}")
        a(f"ds_read_b64 v[{fb+2}:{fb+3}], v{t0} offset:{21*GEN_STRIDE+32*s+8}")
    rd(0)
    for s in range(8):
        if s < 7:
            rd(s + 1); a("s_waitcnt lgkmcnt(4)")
        else:
            a("s_waitcnt lgkmcnt(0)")
        fa = FA + 4 * (s % 2); fb = FB + 4 * (s % 2)
        a(f"v_mfma_f32_32x32x16_bf16 v[{ACC}:{ACC+15}], v[{fa}:{fa+3}], v[{fb}:{fb+3}], v[{ACC}:{ACC+15}]")
    a(f"""
    v_and_b32 v{t0}, 31, v2
    v_lshlrev_b32 v{t0}, 2, v{t0}
    v_lshrrev_b32 v{t1}, 5, v2
    v_lshl_add_u32 v{t0}, v{t1}, 9, v{t0}
    v_add_u32 v{t0}, s50, v{t0}
    s_nop 15
    """)
    for r in range(12):
        a(f"ds_write_b32 v{t0}, v{ACC+r} offset:{(8*(r//4) + r%4)*128}")
    a("s_waitcnt lgkmcnt(0)\ns_barrier")
    a(f"""
    v_lshlrev_b32 v{t0}, 2, v0
    """)
    for g in range(3):
        for w in range(4):
            a(f"ds_read_b32 v{ACC+4*g+w}, v{t0} offset:{w*GEN_W + g*1024}")
    a(f"""
    v_lshrrev_b32 v{t1}, 5, v0
    v_and_b32 v{t2}, 31, v0
    v_lshlrev_b32 v{t2}, 2, v{t2}
    v_lshlrev_b32 v61, 8, v{t1}
    v_add_u32 v61, 1024, v61
    v_lshlrev_b32 v62, 9, v{t1}
    v_cmp_gt_u32 vcc, 4, v{t1}
    s_nop 1
    v_cndmask_b32 v61, v62, v61, vcc
    v_add_u32 v61, v61, v{t2}
    v_lshlrev_b32 v62, 10, v{t1}
    v_add_u32 v62, v62, v{t2}
    s_waitcnt lgkmcnt(0)
    """)
    for g in range(3):
        a(f"""
        v_add_f32 v{ACC+4*g}, v{ACC+4*g}, v{ACC+4*g+1}
        v_add_f32 v{ACC+4*g+2}, v{ACC+4*g+2}, v{ACC+4*g+3}
        v_add_f32 v{ACC+4*g}, v{ACC+4*g}, v{ACC+4*g+2}
        v_mul_f32 v{ACC+4*g}, v{ACC+4*g}, v{DT2}
        """)
    a(f"""
    ds_write_b32 v{t0}, v{ACC} offset:{L_T}
    ds_write_b32 v61, v{ACC+4} offset:{L_T}
    v_cmp_gt_u32 vcc, 5, v{t1}
    s_and_saveexec_b64 s[52:53], vcc
    ds_write_b32 v62, v{ACC+8} offset:{L_T+4096}
    s_mov_b64 exec, s[52:53]
    v_mov_b32 v61, 0
    v_mov_b32 v62, {L_T+ZADDR}
    ds_write_b32 v62, v61
    s_waitcnt lgkmcnt(0)
    s_barrier
    """)
    for st in range(2):
        G = 88
        if st == 1:
            a("v_cmp_gt_u32 vcc, 4, v0\ns_and_saveexec_b64 s[52:53], vcc")
            lab = a.label("exp")
            a(f"s_cbranch_execz {lab}")
        for k in range(9): a(f"ds_read_b32 v{G+k}, v{24+9*st+k}")
        a(f"v_lshlrev_b32 v{t0}, 4, v0\nv_add_u32 v{t0}, {L_CP}, v{t0}\ns_waitcnt lgkmcnt(0)")
        for k in range(4):
            a(f"v_cvt_pk_bf16_f32 v{104+k}, v{G+2*k+1}, v{G+2*k+2}")
            a(f"v_cvt_pk_bf16_f32 v{108+k}, v{G+2*k}, v{G+2*k+1}")
        a(f"ds_write_b128 v{t0}, v[104:107] offset:{c*2*CPS + 4096*st}")
        a(f"ds_write_b128 v{t0}, v[108:111] offset:{c*2*CPS + CPS + 4096*st}")
        if st == 1:
            a(f"{lab}:\ns_mov_b64 exec, s[52:53]")
    a("s_waitcnt lgkmcnt(0)\ns_barrier")

def emit_cv(a, coh=""):
    ACC = 8+16
    S = [64, 128]
    vAa, vBa, vT = 4, 5, 6
    a(f"""
    s_lshr_b32 s50, s24, 1
    s_and_b32 s51, s24, 1
    v_and_b32 v56, 15, v2
    v_lshrrev_b32 v57, 4, v2
    v_and_b32 v58, 1, v56
    v_mul_u32_u24 v58, {CPS}, v58
    v_and_b32 v59, 14, v56
    v_lshlrev_b32 v59, 1, v59
    v_sub_u32 v58, v58, v59
    v_lshl_add_u32 v58, v57, 4, v58
    s_mul_i32 s52, s50, {2*CPS}
    s_lshl_b32 s53, s51, 8
    s_sub_u32 s52, s52, s53
    s_add_u32 s52, s52, {L_CP + 2*2032}
    v_add_u32 v{vAa}, s52, v58
    v_lshlrev_b32 v58, 5, v56
    v_lshl_add_u32 v58, v57, 4, v58
    s_mul_i32 s52, s50, 4608
    s_sub_u32 s52, s52, s53
    s_add_u32 s52, s52, {L_XS + 2*(256-16) - 256}
    v_add_u32 v{vBa}, s52, v58
    """)
    def loads(rr, S0):
        ops = []
        for j in range(8):
            off = 256 + 512 * j - 64 * rr
            ops.append(f"ds_read_b128 v[{S0+4*j}:{S0+4*j+3}], v{vBa} offset:{off}")
        for q in range(8):
            d = S0 + 32 + 4 * q
            ops.append(f"v_subrev_u32 v{vT}, {64*rr+512*q}, v{vAa}\nds_read2_b32 v[{d}:{d+1}], v{vT} offset0:0 offset1:1\nds_read2_b32 v[{d+2}:{d+3}], v{vT} offset0:2 offset1:3")
        return ops
    for i in range(32): a(f"v_mov_b32 v{ACC+i}, 0")
    for op in loads(0, S[0]): a(op)
    for rr in range(4):
        S0 = S[rr % 2]
        a("s_waitcnt lgkmcnt(0)")
        nxt = loads(rr + 1, S[(rr + 1) % 2]) if rr < 3 else []
        n = 0
        for q in range(8):
            for cb in range(q, 8):
                A = S0 + 32 + 4 * q; B = S0 + 4 * (cb - q)
                a(f"v_mfma_f32_16x16x32_bf16 v[{ACC+4*cb}:{ACC+4*cb+3}], v[{A}:{A+3}], v[{B}:{B+3}], v[{ACC+4*cb}:{ACC+4*cb+3}]")
                n += 1
                if n % 2 == 0 and nxt: a(nxt.pop(0))
        while nxt: a(nxt.pop(0))
    a(f"""
    s_nop 7
    v_lshlrev_b32 v56, 4, v2
    s_lshl_b32 s52, s24, 12
    v_add_u32 v57, s52, v56
    s_xor_b32 s53, s24, 1
    s_lshl_b32 s53, s53, 12
    v_add_u32 v58, s53, v56
    s_cmp_eq_u32 s51, 0
    """)
    l1 = a.label("cv"); l2 = a.label("cv")
    a(f"s_cbranch_scc0 {l1}")
    for k in range(4): a(f"ds_write_b128 v57, v[{ACC+16+4*k}:{ACC+16+4*k+3}] offset:{1024*k}")
    a(f"s_branch {l2}\n{l1}:")
    for k in range(4): a(f"ds_write_b128 v57, v[{ACC+4*k}:{ACC+4*k+3}] offset:{1024*k}")
    for k in range(16): a(f"v_mov_b32 v{ACC+k}, v{ACC+16+k}")
    a(f"{l2}:\ns_waitcnt lgkmcnt(0)\ns_barrier")
    for k in range(4): a(f"ds_read_b128 v[{64+4*k}:{64+4*k+3}], v58 offset:{1024*k}")
    a(f"""
    v_and_b32 v56, 15, v2
    v_lshrrev_b32 v57, 4, v2
    v_lshlrev_b32 v56, 5, v56
    v_lshl_add_u32 v56, v57, 3, v56
    s_lshl_b32 s52, s51, 11
    v_add_u32 v59, s52, v56
    s_mul_i32 s53, s50, 4608
    s_add_u32 s53, s53, {L_XS + 512}
    v_add_u32 v57, s53, v59
    """)
    for k in range(4): a(f"ds_read_b64 v[{80+2*k}:{80+2*k+1}], v57 offset:{512*k}")
    a(f"""
    s_cmp_eq_u32 s50, 0
    s_cselect_b64 vcc, -1, 0
    s_lshl_b32 s52, s25, 1
    s_add_u32 s52, s52, s50
    s_lshl_b32 s52, s52, 12
    v_cndmask_b32 v60, v21, v13, vcc
    s_waitcnt lgkmcnt(0)
    """)
    for k in range(4):
        for e in range(4): a(f"v_add_f32 v{ACC+4*k+e}, v{ACC+4*k+e}, v{64+4*k+e}")
        X = 80 + 2 * k
        a(f"""
        v_lshlrev_b32 v90, 16, v{X}
        v_and_b32 v91, 0xffff0000, v{X}
        v_lshlrev_b32 v92, 16, v{X+1}
        v_and_b32 v93, 0xffff0000, v{X+1}
        v_mul_f32 v90, v90, v60
        v_mul_f32 v91, v91, v60
        v_mul_f32 v92, v92, v60
        v_mul_f32 v93, v93, v60
        v_cvt_pk_bf16_f32 v94, v90, v91
        v_cvt_pk_bf16_f32 v95, v92, v93
        v_cvt_pk_bf16_f32 v96, v{ACC+4*k}, v{ACC+4*k+1}
        v_cvt_pk_bf16_f32 v97, v{ACC+4*k+2}, v{ACC+4*k+3}
        v_lshlrev_b32 v90, 16, v94
        v_and_b32 v91, 0xffff0000, v94
        v_lshlrev_b32 v92, 16, v95
        v_and_b32 v93, 0xffff0000, v95
        v_lshlrev_b32 v98, 16, v96
        v_and_b32 v99, 0xffff0000, v96
        v_lshlrev_b32 v100, 16, v97
        v_and_b32 v101, 0xffff0000, v97
        v_add_f32 v90, v90, v98
        v_add_f32 v91, v91, v99
        v_add_f32 v92, v92, v100
        v_add_f32 v93, v93, v101
        v_cvt_pk_bf16_f32 v{102+2*k}, v90, v91
        v_cvt_pk_bf16_f32 v{103+2*k}, v92, v93
        buffer_store_dwordx2 v[{102+2*k}:{103+2*k}], v59, s[32:35], s52 offen offset:{512*k} {coh}
        """)

def emit_xs_load(a, coh=""):
    a(f"""
    s_lshr_b32 s50, s24, 1
    s_and_b32 s51, s24, 1
    s_lshl_b32 s52, s25, 1
    s_add_u32 s52, s52, s50
    s_lshl_b32 s52, s52, 12
    s_lshl_b32 s53, s51, 11
    s_add_u32 s52, s52, s53
    s_mul_i32 s54, s50, 4608
    s_add_u32 s54, s54, s53
    s_add_u32 m0, s54, {L_XS + 512}
    v_lshlrev_b32 v4, 4, v2
    buffer_load_dwordx4 v4, s[56:59], s52 offen lds {coh}
    s_add_u32 m0, s54, {L_XS + 512 + 1024}
    s_add_u32 s52, s52, 1024
    buffer_load_dwordx4 v4, s[56:59], s52 offen lds {coh}
    v_mov_b32 v5, 0
    v_lshlrev_b32 v6, 1, v0
    v_and_b32 v7, 0x1fc, v6
    v_lshrrev_b32 v6, 7, v0
    v_mul_u32_u24 v6, 4608, v6
    v_and_b32 v7, 127, v0
    v_lshl_add_u32 v6, v7, 2, v6
    v_add_u32 v6, {L_XS}, v6
    ds_write_b32 v6, v5
    """)
```

```python
import sys
from asmlib import *
from role_g1 import emit_g1
from role_kc import *
from role_g2 import *
extra = int(sys.argv[2]) if len(sys.argv) > 2 else 0
hdr = open("cdna_kernels/" + NAME + ".s.ref").read().split("; Override")[0]
a = Asm()
a(f"; @launch kernel=g1_kernel grid=(224,1,1) block=(256,1,1) lds=66560")
a(f"; @launch kernel=kc_kernel grid=(224,1,1) block=(256,1,1) lds=81920")
for i in range(extra): a(f"; @launch kernel=nop_kernel grid=(224,1,1) block=(256,1,1) lds=0")
a(f"; @launch kernel=g2_kernel grid=(224,1,1) block=(256,1,1) lds=78848")
a('.amdgcn_target "amdgcn-amd-amdhsa--gfx950"\n.text')
a(kernel_header("g1_kernel"))
a("s_cmp_ge_u32 s2, 224\ns_cbranch_scc1 L_g1_end")
emit_g1(a)
a("L_g1_end:\ns_endpgm")
a(kernel_header("kc_kernel"))
a("s_cmp_ge_u32 s2, 224\ns_cbranch_scc1 L_kc_end")
emit_kg_setup(a)
a.srd(32, 48, 1835008, WS_ST); a.srd(56, 48, 1835008, WS_XNT)
emit_xs_load(a)
emit_kg_channel(a, 0)
emit_kg_channel(a, 1)
emit_cv(a)
a("L_kc_end:\ns_endpgm")
a(kernel_header("g2_kernel"))
a("s_cmp_ge_u32 s2, 224\ns_cbranch_scc1 L_g2_end")
emit_g2_setup(a)
emit_g2(a)
a("L_g2_end:\ns_endpgm")
if extra:
    a(kernel_header("nop_kernel")); a("s_endpgm")
a('.section .rodata,"a"')
a(kernel_desc("g1_kernel", 128))
a(kernel_desc("kc_kernel", 192))
a(kernel_desc("g2_kernel", 192))
if extra: a(kernel_desc("nop_kernel", 8))
open(sys.argv[1], "w").write(hdr + a.text())
```

```python
NAME = "recurrent_scan__ssm_conv_s4d__dense_activation_mish__prompt"
KA = dict(u=0, logA=8, Aim=16, Cre=24, Cim=32, logdt=40, D=48, bx=56, w1=64, b1=72, w2=80, out=88, dbg=96, ws=104)
SZ = dict(u=1835008, logA=229376, Aim=229376, Cre=229376, Cim=229376, logdt=896, D=896, w1=1605632, b1=3584, w2=1605632, out=1835008, dbg=256)
WS_ACT = 0
WS_XNT = 0x800000
WS_ST  = 0xA00000
WS_KC  = 0xC00000
WS_FLAG= 0x1000000
WS_SIZE = 0x1400000

class Asm:
    def __init__(self):
        self.L = []
        self.uid = 0
    def __call__(self, s):
        for line in s.strip("\n").split("\n"):
            self.L.append(line.strip())
    def label(self, base):
        self.uid += 1
        return f"L_{base}_{self.uid}"
    def text(self):
        return "\n".join(self.L) + "\n"
    def srd(self, s, base_lo, nbytes, add=0):
        if add:
            self(f"s_add_u32 s{s}, s{base_lo}, {add}")
            self(f"s_addc_u32 s{s+1}, s{base_lo+1}, 0")
        else:
            self(f"s_mov_b32 s{s}, s{base_lo}")
            self(f"s_mov_b32 s{s+1}, s{base_lo+1}")
        self(f"s_mov_b32 s{s+2}, {nbytes}")
        self(f"s_mov_b32 s{s+3}, 0x20000")

def vr(a, n=1):
    return f"v{a}" if n == 1 else f"v[{a}:{a+n-1}]"
def sr(a, n=1):
    return f"s{a}" if n == 1 else f"s[{a}:{a+n-1}]"

def kernel_header(name):
    return f".globl {name}\n.p2align 8\n.type {name},@function\n{name}:\n"
def kernel_desc(name, vgpr, sgpr=102):
    acc = (vgpr + 3) // 4 * 4
    return f""".p2align 6
.amdhsa_kernel {name}
  .amdhsa_next_free_vgpr {vgpr}
  .amdhsa_next_free_sgpr {sgpr}
  .amdhsa_accum_offset {acc}
  .amdhsa_group_segment_fixed_size 0
  .amdhsa_kernarg_size 112
  .amdhsa_user_sgpr_count 2
  .amdhsa_user_sgpr_kernarg_segment_ptr 1
  .amdhsa_system_sgpr_workgroup_id_x 1
.end_amdhsa_kernel
"""
LOG2E = 0x3fb8aa3b
def f2u(x):
    import struct
    return struct.unpack("<I", struct.pack("<f", x))[0]

WS_STAMP = 0x1080000
NSTAMP = 12
def stamp_begin(a):
    for i in range(NSTAMP): a(f"s_mov_b32 s{70+2*i}, 0")
    a("s_memrealtime s[70:71]\ns_memtime s[88:89]")
def stamp_mark(a, idx):
    a(f"s_memrealtime s[{70+2*idx}:{71+2*idx}]")
def stamp_end(a, launch, wg="s2"):
    lab = a.label("st")
    a(f"""
    s_waitcnt vmcnt(0)
    s_memrealtime s[{70+2*(NSTAMP-1)}:{71+2*(NSTAMP-1)}]
    s_memtime s[90:91]
    s_load_dwordx2 s[64:65], s[0:1], {KA['ws']}
    s_waitcnt lgkmcnt(0)
    s_add_u32 s64, s64, {WS_STAMP + launch*0x40000}
    s_addc_u32 s65, s65, 0
    s_mov_b32 s66, 0x40000
    s_mov_b32 s67, 0x20000
    v_lshrrev_b32 v250, 6, v0
    v_lshlrev_b32 v250, 6, v250
    s_lshl_b32 s68, {wg}, 9
    v_add_u32 v250, s68, v250
    v_and_b32 v251, 63, v0
    v_cmp_eq_u32 vcc, 0, v251
    s_and_saveexec_b64 s[68:69], vcc
    """)
    for i in range(NSTAMP):
        a(f"v_mov_b32 v251, s{70+2*i}\nbuffer_store_dword v251, v250, s[64:67], 0 offen offset:{4*i}")
    a("s_mov_b64 exec, s[68:69]")
```

```python
from asmlib import *

def emit_g1(a, coh="", wg="s2", done=None, mark=lambda a, i: None, prefetch=True):
    ACC = 64
    AS = [16, 32]; BS = [48, 52]
    vA = [4, 5, 6, 7]; vB = [8, 9]; vXo = 10; vWo = 11
    vSum, vSq, vCs = 12, 13, 14
    vOnes = 15
    vB1 = 60
    sU, sW1, sACT, sXNT, sBB = 4, 8, 12, 16, 20
    sw, srb, sfs, sCC, sXb, sWb, sM, sT0, sT1 = 24, 25, 26, 27, 28, 29, 30, 31, 32
    a(f"""
    s_load_dwordx2 s[36:37], s[0:1], {KA['u']}
    s_load_dwordx2 s[38:39], s[0:1], {KA['w1']}
    s_load_dwordx2 s[40:41], s[0:1], {KA['b1']}
    s_load_dwordx2 s[42:43], s[0:1], {KA['ws']}
    v_lshrrev_b32 v1, 6, v0
    v_and_b32 v2, 63, v0
    s_and_b32 s{sT0}, {wg}, 7
    s_lshr_b32 s{sT1}, {wg}, 3
    v_readfirstlane_b32 s{sw}, v1
    s_and_b32 s{srb}, s{sT0}, 3
    s_lshl_b32 s{srb}, s{srb}, 2
    s_and_b32 s33, s{sT1}, 3
    s_add_u32 s{srb}, s{srb}, s33
    s_lshr_b32 s{sT0}, s{sT0}, 2
    s_mul_i32 s{sT0}, s{sT0}, 7
    s_lshr_b32 s{sT1}, s{sT1}, 2
    s_add_u32 s{sfs}, s{sT0}, s{sT1}
    """)
    a(f"""
    v_lshrrev_b32 v3, 2, v2
    v_mul_u32_u24 v{vXo}, 896, v3
    v_and_b32 v56, 3, v2
    v_lshrrev_b32 v57, 4, v2
    v_and_b32 v57, 3, v57
    v_xor_b32 v58, v56, v57
    v_lshl_add_u32 v{vXo}, v58, 4, v{vXo}
    v_lshrrev_b32 v58, 4, v2
    v_mul_u32_u24 v{vWo}, 3584, v58
    v_lshrrev_b32 v59, 2, v2
    v_and_b32 v59, 3, v59
    v_xor_b32 v59, v59, v57
    v_lshl_add_u32 v{vWo}, v59, 6, v{vWo}
    v_lshl_add_u32 v{vWo}, v56, 4, v{vWo}
    s_waitcnt lgkmcnt(0)
    """)
    a.srd(sU, 36, SZ['u']); a.srd(sW1, 38, SZ['w1']); a.srd(sBB, 40, SZ['b1'])
    a.srd(sACT, 42, 7340032, WS_ACT); a.srd(sXNT, 42, 1835008, WS_XNT)
    a(f"""
    s_mul_i32 s{sXb}, s{srb}, 114688
    s_mul_i32 s{sT0}, s{sw}, 28672
    s_add_u32 s{sXb}, s{sXb}, s{sT0}
    s_mul_i32 s{sWb}, s{sw}, 28672
    s_lshl_b32 s{sT0}, s{sfs}, 8
    s_add_u32 s{sWb}, s{sWb}, s{sT0}
    s_lshl_b32 s{sM}, s{sw}, 11
    s_add_u32 s{sCC}, s{sfs}, 1
    s_cmp_eq_u32 s{sCC}, 14
    s_cselect_b32 s{sCC}, 0, s{sCC}
    """)
    def dma(stage):
        a(f"""
        s_lshl_b32 s{sT0}, s{sCC}, 6
        s_add_u32 s{sT0}, s{sT0}, s{sXb}
        s_add_u32 m0, s{sM}, {stage*16384}
        s_mul_i32 s{sT1}, s{sCC}, 114688
        buffer_load_dwordx4 v{vXo}, s[{sU}:{sU+3}], s{sT0} offen lds
        s_add_u32 m0, s{sM}, {stage*16384+1024}
        s_add_u32 s{sT0}, s{sT0}, 14336
        buffer_load_dwordx4 v{vXo}, s[{sU}:{sU+3}], s{sT0} offen lds
        s_add_u32 m0, s{sM}, {stage*16384+8192}
        s_add_u32 s{sT1}, s{sT1}, s{sWb}
        buffer_load_dwordx4 v{vWo}, s[{sW1}:{sW1+3}], s{sT1} offen lds
        s_add_u32 m0, s{sM}, {stage*16384+8192+1024}
        s_add_u32 s{sT1}, s{sT1}, 14336
        buffer_load_dwordx4 v{vWo}, s[{sW1}:{sW1+3}], s{sT1} offen lds
        s_add_u32 s{sCC}, s{sCC}, 1
        s_cmp_eq_u32 s{sCC}, 14
        s_cselect_b32 s{sCC}, 0, s{sCC}
        """)
    a(f"""
    v_and_b32 v56, 31, v2
    v_lshlrev_b32 v56, 1, v56
    s_lshl_b32 s{sT0}, s{sfs}, 8
    """)
    for j in range(4):
        a(f"""
        s_add_u32 s{sT1}, s{sw}, {j}
        s_and_b32 s{sT1}, s{sT1}, 3
        s_lshl_b32 s{sT1}, s{sT1}, 6
        s_add_u32 s{sT1}, s{sT1}, s{sT0}
        buffer_load_ushort v{vB1+j}, v56, s[{sBB}:{sBB+3}], s{sT1} offen
        """)
    for c in range(3): dma(c)
    NPF = 0
    if prefetch:
        a(f"""
        v_lshrrev_b32 v56, 1, v2
        v_and_b32 v57, 1, v2
        v_mul_u32_u24 v58, 896, v56
        v_lshl_add_u32 v58, v57, 7, v58
        v_mul_u32_u24 v59, 3584, v56
        v_lshl_add_u32 v59, v57, 7, v59
        s_mul_i32 s{sT1}, s{sw}, {112*3584}
        s_lshl_b32 s33, s{sfs}, 8
        s_add_u32 s{sT1}, s{sT1}, s33
        """)
        for i in range(4):
            a(f"s_add_u32 s33, s{sXb}, {256*i}\nbuffer_load_dword v128, v58, s[{sU}:{sU+3}], s33 offen")
            a(f"s_add_u32 s33, s{sT1}, {32*3584*i}\nbuffer_load_dword v128, v59, s[{sW1}:{sW1+3}], s33 offen")
        NPF = 8
    a(f"""
    v_and_b32 v56, 31, v2
    v_lshrrev_b32 v57, 5, v2
    v_lshrrev_b32 v58, 2, v56
    v_and_b32 v58, 3, v58
    v_xor_b32 v58, v58, v57
    v_lshlrev_b32 v58, 4, v58
    v_lshl_add_u32 v58, v56, 6, v58
    s_lshl_b32 s{sT0}, s{sw}, 11
    v_add_u32 v{vB[0]}, s{sT0}, v58
    v_xor_b32 v{vB[1]}, 32, v{vB[0]}
    v_and_b32 v56, 15, v2
    v_lshrrev_b32 v58, 2, v56
    v_and_b32 v59, 3, v56
    v_lshl_add_u32 v1, v57, 3, v58
    v_lshlrev_b32 v1, 8, v1
    v_lshl_add_u32 v1, v59, 3, v1
    v_lshrrev_b32 v3, 4, v2
    v_and_b32 v3, 1, v3
    v_lshl_add_u32 v1, v3, 5, v1
    """)
    for j in range(4):
        a(f"""
        s_add_u32 s{sT1}, s{sw}, {j}
        s_and_b32 s{sT1}, s{sT1}, 3
        v_xor_b32 v3, s{sT1}, v58
        v_lshl_add_u32 v{vA[j]}, v3, 6, v1
        """)
    a(f"v_mov_b32 v{vSum}, 0\nv_mov_b32 v{vSq}, 0\nv_mov_b32 v{vCs}, 0\nv_mov_b32 v{vOnes}, 0x3f803f80")
    for i in range(64): a(f"v_mov_b32 v{ACC+i}, 0")
    def reads(sig):
        c, s = sig // 2, sig % 2
        st = (c % 4) * 16384
        A = AS[sig % 2]; B = BS[sig % 2]
        a(f"ds_read_b128 v[{B}:{B+3}], v{vB[s]} offset:{st}")
        for j in range(4):
            for q in range(2):
                a(f"ds_read_b64_tr_b16 v[{A+4*j+2*q}:{A+4*j+2*q+1}], v{vA[j]} offset:{st+8192+s*4096+q*1024}")
    def compute(sig):
        A = AS[sig % 2]; B = BS[sig % 2]
        for j in range(4):
            a(f"v_mfma_f32_32x32x16_bf16 v[{ACC+16*j}:{ACC+16*j+15}], v[{A+4*j}:{A+4*j+3}], v[{B}:{B+3}], v[{ACC+16*j}:{ACC+16*j+15}]")
            a(f"v_dot2c_f32_bf16 v{vSum}, v{B+j}, v{vOnes}")
            a(f"v_dot2c_f32_bf16 v{vSq}, v{B+j}, v{B+j}")
            a(f"v_dot2c_f32_bf16 v{vCs}, v{A+j}, v{vOnes}")
    a(f"s_waitcnt vmcnt({8+NPF})\ns_barrier")
    mark(a, 3)
    dma(3)
    reads(0)
    for sig in range(28):
        nxt = sig + 1
        if nxt < 28:
            if nxt % 2 == 0:
                c = nxt // 2
                outstanding_after = min(13, c + 2) - c
                a(f"s_waitcnt vmcnt({4*outstanding_after + (NPF if c <= 2 else 0)}) lgkmcnt(0)\ns_barrier")
                if c + 3 < 14: dma((c + 3) % 4)
                reads(nxt)
            else:
                reads(nxt)
                a("s_waitcnt lgkmcnt(9)")
        else:
            a("s_waitcnt lgkmcnt(0)")
        compute(sig)
    mark(a, 4)
    a(f"""
    s_nop 3
    v_mov_b32 v56, v{vSum}
    v_mov_b32 v57, v{vSq}
    v_mov_b32 v58, v{vCs}
    s_nop 1
    v_permlane32_swap_b32 v{vSum}, v56
    v_permlane32_swap_b32 v{vSq}, v57
    v_permlane32_swap_b32 v{vCs}, v58
    s_nop 1
    v_add_f32 v{vSum}, v{vSum}, v56
    v_add_f32 v{vSq}, v{vSq}, v57
    v_add_f32 v{vCs}, v{vCs}, v58
    v_and_b32 v56, 31, v2
    v_lshlrev_b32 v56, 2, v56
    s_lshl_b32 s{sT0}, s{sw}, 7
    s_add_u32 s{sT0}, s{sT0}, 65536
    v_add_u32 v56, s{sT0}, v56
    ds_write_b32 v56, v{vCs}
    v_mul_f32 v{vSum}, {f2u(1.0/448)}, v{vSum}
    v_mul_f32 v{vSq}, {f2u(1.0/448)}, v{vSq}
    v_fma_f32 v{vSq}, -v{vSum}, v{vSum}, v{vSq}
    v_max_f32 v{vSq}, 0, v{vSq}
    v_cvt_pk_bf16_f32 v57, v{vSum}, v{vSq}
    v_and_b32 v58, 0xffff0000, v57
    v_lshlrev_b32 v{vSum}, 16, v57
    v_add_f32 v58, {f2u(1e-5)}, v58
    v_cvt_pk_bf16_f32 v58, v58, v58
    v_and_b32 v58, 0xffff0000, v58
    v_sqrt_f32 v58, v58
    s_nop 0
    v_cvt_pk_bf16_f32 v58, v58, v58
    v_and_b32 v{vSq}, 0xffff0000, v58
    v_rcp_f32 v{vCs}, v{vSq}
    s_waitcnt lgkmcnt(0)
    s_barrier
    """)
    vM, vDen, vR = vSum, vSq, vCs
    a(f"v_and_b32 v56, 31, v2\nv_lshlrev_b32 v56, 2, v56")
    for j in range(4):
        a(f"""
        s_add_u32 s{sT1}, s{sw}, {j}
        s_and_b32 s{sT1}, s{sT1}, 3
        s_lshl_b32 s{sT1}, s{sT1}, 7
        s_add_u32 s{sT1}, s{sT1}, 65536
        v_add_u32 v57, s{sT1}, v56
        ds_read_b32 v{16+4*j}, v57
        """)
    a(f"""
    v_lshrrev_b32 v57, 5, v2
    v_mul_u32_u24 v57, {8*272}, v57
    v_and_b32 v58, 31, v2
    v_lshl_add_u32 v57, v58, 1, v57
    s_lshl_b32 s{sT0}, s{sw}, 6
    v_add_u32 v57, s{sT0}, v57
    """)
    for s in range(2):
        for i in range(4):
            src = BS[s] + i
            a(f"""
            v_lshlrev_b32 v32, 16, v{src}
            v_and_b32 v33, 0xffff0000, v{src}
            v_sub_f32 v32, v32, v{vM}
            v_sub_f32 v33, v33, v{vM}
            v_cvt_pk_bf16_f32 v34, v32, v33
            v_lshlrev_b32 v32, 16, v34
            v_and_b32 v33, 0xffff0000, v34
            v_mul_f32 v32, v32, v{vR}
            v_mul_f32 v33, v33, v{vR}
            v_cvt_pk_bf16_f32 v{36+4*s+i}, v32, v33
            """)
            a(f"ds_write_b16 v57, v{36+4*s+i} offset:{(16*s+2*i)*272}")
            a(f"ds_write_b16_d16_hi v57, v{36+4*s+i} offset:{(16*s+2*i+1)*272}")
    a(f"""
    v_sub_f32 v32, 0, v{vM}
    v_cvt_pk_bf16_f32 v48, v32, v32
    v_lshrrev_b32 v49, 16, v{vDen}
    v_mov_b32 v50, 0
    v_mov_b32 v51, 0
    v_cmp_gt_u32 vcc, 32, v2
    s_nop 1
    v_cndmask_b32 v48, 0, v48, vcc
    v_cndmask_b32 v49, 0, v49, vcc
    s_waitcnt lgkmcnt(16)
    """.replace("lgkmcnt(16)", "lgkmcnt(0)"))
    for j in range(4):
        A = 16 + 4 * j
        a(f"""
        v_cvt_pk_bf16_f32 v32, v{A}, v{A}
        v_lshlrev_b32 v32, 16, v32
        v_sub_f32 v33, v{A}, v32
        v_cvt_pk_bf16_f32 v{A}, v32, v33
        v_mov_b32 v{A+1}, v{vB1+j}
        v_mov_b32 v{A+2}, 0
        v_mov_b32 v{A+3}, 0
        """)
    a("s_nop 1")
    for j in range(4):
        A = 16 + 4 * j
        a(f"v_mfma_f32_32x32x16_bf16 v[{ACC+16*j}:{ACC+16*j+15}], v[{A}:{A+3}], v[48:51], v[{ACC+16*j}:{ACC+16*j+15}]")
    a(f"""
    s_waitcnt lgkmcnt(0)
    s_barrier
    v_lshrrev_b32 v56, 4, v0
    v_and_b32 v57, 15, v0
    v_mul_u32_u24 v58, 272, v56
    v_lshl_add_u32 v58, v57, 4, v58
    ds_read_b128 v[32:35], v58
    ds_read_b128 v[36:39], v58 offset:{16*272}
    v_lshlrev_b32 v56, 12, v56
    v_lshl_add_u32 v56, v57, 4, v56
    s_lshl_b32 s{sT0}, s{sfs}, 17
    s_lshl_b32 s{sT1}, s{srb}, 8
    s_add_u32 s{sT0}, s{sT0}, s{sT1}
    s_add_u32 s{sT1}, s{sT0}, 65536
    v_mul_f32 v59, {LOG2E}, v{vR}
    v_mul_f32 v3, -2.0, v{vR}
    v_lshlrev_b32 v1, 4, v2
    s_waitcnt lgkmcnt(1)
    buffer_store_dwordx4 v[32:35], v56, s[{sXNT}:{sXNT+3}], s{sT0} offen {coh}
    s_waitcnt lgkmcnt(0)
    buffer_store_dwordx4 v[36:39], v56, s[{sXNT}:{sXNT+3}], s{sT1} offen {coh}
    """)
    mark(a, 5)
    a(f"""
    s_lshl_b32 s{sT0}, s{srb}, 2
    s_add_u32 s{sT0}, s{sT0}, s{sw}
    s_mul_i32 s{sT0}, s{sT0}, 112
    s_lshl_b32 s{sT1}, s{sfs}, 3
    s_add_u32 s{sT0}, s{sT0}, s{sT1}
    s_lshl_b32 s33, s{sT0}, 10
    """)
    Y = 16; T = 24
    for j in range(4):
        a(f"""
        s_add_u32 s{sT1}, s{sw}, {j}
        s_and_b32 s{sT1}, s{sT1}, 3
        s_lshl_b32 s{sT1}, s{sT1}, 11
        s_add_u32 s34, s33, s{sT1}
        """)
        for half in range(2):
            base = ACC + 16 * j + 8 * half
            F = 40 + 4 * half
            for e in range(8): a(f"v_mul_f32 v{Y+e}, v{base+e}, v59")
            for e in range(8): a(f"v_exp_f32 v{Y+e}, v{Y+e}")
            for e in range(8): a(f"v_add_f32 v{T+e}, 2.0, v{Y+e}")
            for e in range(8): a(f"v_fma_f32 v{T+e}, v{Y+e}, v{T+e}, 2.0")
            for e in range(8): a(f"v_rcp_f32 v{T+e}, v{T+e}")
            for e in range(8): a(f"v_fma_f32 v{T+e}, v{T+e}, v3, v{vR}")
            for e in range(8): a(f"v_mul_f32 v{T+e}, v{base+e}, v{T+e}")
            for e in range(4): a(f"v_cvt_pk_bf16_f32 v{F+e}, v{T+2*e}, v{T+2*e+1}")
            a(f"buffer_store_dwordx4 v[{F}:{F+3}], v1, s[{sACT}:{sACT+3}], s34 offen offset:{half*1024} {coh}")
    if done: done(a)
```

```python
from asmlib import *

def emit_g2_setup(a, wg="s2"):
    sw, srb, stb, sdb, sT0, sT1 = 24, 25, 26, 27, 31, 32
    a(f"""
    s_load_dwordx2 s[36:37], s[0:1], {KA['u']}
    s_load_dwordx2 s[38:39], s[0:1], {KA['w2']}
    s_load_dwordx2 s[40:41], s[0:1], {KA['out']}
    s_load_dwordx2 s[42:43], s[0:1], {KA['ws']}
    v_lshrrev_b32 v1, 6, v0
    v_and_b32 v2, 63, v0
    s_and_b32 s{sT0}, {wg}, 7
    s_lshr_b32 s{sT1}, {wg}, 3
    v_readfirstlane_b32 s{sw}, v1
    s_lshl_b32 s{stb}, s{sT0}, 2
    s_and_b32 s{sT0}, s{sT1}, 3
    s_add_u32 s{stb}, s{stb}, s{sT0}
    s_lshr_b32 s{sdb}, s{sT1}, 2
    s_waitcnt lgkmcnt(0)
    """)
    a.srd(4, 36, SZ['u']); a.srd(8, 38, SZ['w2']); a.srd(12, 42, 7340032, WS_ACT); a.srd(16, 42, 1835008, WS_ST); a.srd(20, 40, SZ['out'])

def emit_g2(a, coh="", wait_act=None, wait_st=None, mark=lambda a, i: None):
    sw, stb, sdb, sT0, sT1 = 24, 26, 27, 31, 32
    ACC = 64
    ACT = 128
    AF = [16, 24]
    vWo, vAo, vA0, vA1 = 4, 5, 6, 7
    NS = 8; P = 7
    sAo0, sAo1, sWo, sM = 28, 29, 30, 33
    a(f"""
    v_lshrrev_b32 v8, 3, v2
    v_mul_u32_u24 v{vWo}, 896, v8
    v_lshrrev_b32 v9, 2, v2
    v_and_b32 v9, 1, v9
    v_lshrrev_b32 v10, 4, v2
    v_and_b32 v10, 1, v10
    v_xor_b32 v9, v9, v10
    v_lshl_add_u32 v{vWo}, v9, 6, v{vWo}
    v_and_b32 v9, 3, v2
    v_lshl_add_u32 v{vWo}, v9, 4, v{vWo}
    v_lshlrev_b32 v{vAo}, 4, v2
    s_lshl_b32 s{sT0}, s{stb}, 1
    s_mul_i32 s{sT0}, s{sT0}, 112
    s_mul_i32 s{sT1}, s{sw}, 28
    s_add_u32 s{sT0}, s{sT0}, s{sT1}
    s_lshl_b32 s{sAo0}, s{sT0}, 10
    s_add_u32 s{sAo1}, s{sAo0}, {112*1024}
    s_mul_i32 s{sWo}, s{sT1}, {16*896}
    s_lshl_b32 s{sT0}, s{sdb}, 7
    s_add_u32 s{sWo}, s{sWo}, s{sT0}
    s_lshl_b32 s{sM}, s{sw}, 14
    """)
    a(f"""
    v_and_b32 v8, 15, v2
    v_lshrrev_b32 v9, 2, v8
    v_and_b32 v10, 3, v8
    v_lshrrev_b32 v11, 5, v2
    v_lshl_add_u32 v11, v11, 2, v9
    v_lshlrev_b32 v11, 7, v11
    v_lshl_add_u32 v11, v10, 3, v11
    v_lshrrev_b32 v12, 4, v2
    v_and_b32 v12, 1, v12
    v_lshl_add_u32 v11, v12, 5, v11
    v_lshrrev_b32 v9, 1, v9
    v_lshl_add_u32 v{vA0}, v9, 6, v11
    v_xor_b32 v9, 1, v9
    v_lshl_add_u32 v{vA1}, v9, 6, v11
    v_add_u32 v{vA0}, s{sM}, v{vA0}
    v_add_u32 v{vA1}, s{sM}, v{vA1}
    """)
    def wload(k):
        slot = k % NS
        a(f"""
        s_add_u32 m0, s{sM}, {slot*2048}
        s_add_u32 s{sT0}, s{sWo}, {k*16*896}
        buffer_load_dwordx4 v{vWo}, s[8:11], s{sT0} offen lds
        s_add_u32 m0, s{sM}, {slot*2048+1024}
        s_add_u32 s{sT0}, s{sT0}, {8*896}
        buffer_load_dwordx4 v{vWo}, s[8:11], s{sT0} offen lds
        """)
    def aload(k):
        slot = k % NS
        R = ACT + 8 * slot
        a(f"""
        s_add_u32 s{sT0}, s{sAo0}, {k*1024}
        s_add_u32 s{sT1}, s{sAo1}, {k*1024}
        buffer_load_dwordx4 v[{R}:{R+3}], v{vAo}, s[12:15], s{sT0} offen {coh}
        buffer_load_dwordx4 v[{R+4}:{R+7}], v{vAo}, s[12:15], s{sT1} offen {coh}
        """)
    for k in range(P): wload(k)
    for i in range(64): a(f"v_mov_b32 v{ACC+i}, 0")
    if wait_act: wait_act(a)
    for k in range(P): aload(k)
    def reads(k):
        slot = k % NS; F = AF[k % 2]
        for dt, va in ((0, vA0), (1, vA1)):
            for q in range(2):
                a(f"ds_read_b64_tr_b16 v[{F+4*dt+2*q}:{F+4*dt+2*q+1}], v{va} offset:{slot*2048+q*1024}")
    def outstanding_after(k):
        if k < P: return 2 * (P - 1 - k) + 4 * min(k, 28 - P)
        return 4 * (min(k + P, 28) - 1 - k)
    a(f"s_waitcnt vmcnt({outstanding_after(0)})")
    mark(a, 3)
    reads(0)
    for k in range(28):
        if k + 1 < 28:
            pass
        if k + P < 28:
            pass
        if k + 1 < 28:
            if k + 1 < P:
                n = 2 * (P - 1 - (k + 1)) + 4 * min(k, 28 - P)
            else:
                n = 4 * (min(k - 1 + P, 27) - (k + 1))
            a(f"s_waitcnt vmcnt({n})")
            reads(k + 1)
            a("s_waitcnt lgkmcnt(4)")
        else:
            a("s_waitcnt lgkmcnt(0)")
        if k + P < 28:
            wload(k + P)
        F = AF[k % 2]; R = ACT + 8 * (k % NS)
        for dt in range(2):
            for tt in range(2):
                D = ACC + 16 * (2 * dt + tt)
                a(f"v_mfma_f32_32x32x16_bf16 v[{D}:{D+15}], v[{F+4*dt}:{F+4*dt+3}], v[{R+4*tt}:{R+4*tt+3}], v[{D}:{D+15}]")
        if k + P < 28:
            aload(k + P)
    mark(a, 4)
    a("s_nop 15\ns_barrier")
    a(f"""
    v_and_b32 v8, 31, v2
    v_lshrrev_b32 v9, 5, v2
    v_mul_u32_u24 v8, 272, v8
    v_lshl_add_u32 v8, v9, 4, v8
    s_mul_i32 s{sT0}, s{sw}, 17408
    v_add_u32 v8, s{sT0}, v8
    """)
    for dt in range(2):
        for tt in range(2):
            D = ACC + 16 * (2 * dt + tt)
            for j in range(4):
                a(f"ds_write_b128 v8, v[{D+4*j}:{D+4*j+3}] offset:{tt*32*272 + dt*128 + j*32}")
    if wait_st: wait_st(a)
    LST = 69632
    a(f"""
    v_lshrrev_b32 v9, 2, v0
    v_and_b32 v10, 3, v0
    v_lshlrev_b32 v11, 12, v9
    v_lshl_add_u32 v11, v10, 5, v11
    s_lshl_b32 s{sT0}, s{sdb}, 18
    s_lshl_b32 s{sT1}, s{stb}, 7
    s_add_u32 s{sT0}, s{sT0}, s{sT1}
    buffer_load_dwordx4 v[16:19], v11, s[16:19], s{sT0} offen {coh}
    buffer_load_dwordx4 v[20:23], v11, s[16:19], s{sT0} offen offset:16 {coh}
    v_lshrrev_b32 v12, 3, v0
    v_and_b32 v13, 7, v0
    v_mul_u32_u24 v14, 896, v12
    v_lshl_add_u32 v14, v13, 4, v14
    s_mul_i32 s{sT0}, s{stb}, {64*896}
    s_lshl_b32 s{sT1}, s{sdb}, 7
    s_add_u32 s34, s{sT0}, s{sT1}
    s_add_u32 s35, s34, {32*896}
    buffer_load_dwordx4 v[24:27], v14, s[4:7], s34 offen
    buffer_load_dwordx4 v[28:31], v14, s[4:7], s35 offen
    v_mul_u32_u24 v9, 144, v9
    v_lshl_add_u32 v9, v10, 5, v9
    v_add_u32 v9, {LST}, v9
    s_waitcnt vmcnt(2)
    ds_write_b128 v9, v[16:19]
    ds_write_b128 v9, v[20:23] offset:16
    s_waitcnt lgkmcnt(0)
    s_barrier
    """)
    a(f"""
    v_mul_u32_u24 v9, 272, v12
    v_lshl_add_u32 v9, v13, 5, v9
    v_mul_u32_u24 v10, {8*144}, v13
    v_lshl_add_u32 v10, v12, 1, v10
    v_add_u32 v10, {LST}, v10
    """)
    for p in range(2):
        G = 64
        for w in range(4):
            a(f"ds_read_b128 v[{G+8*w}:{G+8*w+3}], v9 offset:{w*17408 + p*32*272}")
            a(f"ds_read_b128 v[{G+8*w+4}:{G+8*w+7}], v9 offset:{w*17408 + p*32*272 + 16}")
        for e in range(8):
            a(f"ds_read_u16 v{96+e}, v10 offset:{e*144 + p*64}")
        a("s_waitcnt lgkmcnt(0)")
        for e in range(8):
            a(f"v_add_f32 v{G+e}, v{G+e}, v{G+8+e}\nv_add_f32 v{G+16+e}, v{G+16+e}, v{G+24+e}")
        for e in range(8):
            a(f"v_add_f32 v{G+e}, v{G+e}, v{G+16+e}")
        for e in range(0, 8, 2):
            a(f"v_cvt_pk_bf16_f32 v{72+e}, v{G+e}, v{G+e+1}")
            a(f"v_lshlrev_b32 v{G+e}, 16, v{72+e}\nv_and_b32 v{G+e+1}, 0xffff0000, v{72+e}")
        for e in range(8): a(f"v_mul_f32 v{72+e}, {f2u(-1.4426950408889634)}, v{G+e}")
        for e in range(8): a(f"v_exp_f32 v{72+e}, v{72+e}")
        for e in range(8): a(f"v_add_f32 v{72+e}, 1.0, v{72+e}")
        for e in range(8): a(f"v_rcp_f32 v{72+e}, v{72+e}")
        for e in range(8): a(f"v_mul_f32 v{G+e}, v{G+e}, v{72+e}")
        for e in range(0, 8, 2):
            a(f"v_cvt_pk_bf16_f32 v{72+e}, v{G+e}, v{G+e+1}")
            a(f"v_lshlrev_b32 v{G+e}, 16, v{72+e}\nv_and_b32 v{G+e+1}, 0xffff0000, v{72+e}")
        for e in range(8): a(f"v_lshlrev_b32 v{96+e}, 16, v{96+e}\nv_mul_f32 v{G+e}, v{G+e}, v{96+e}")
        if p == 0: a("s_waitcnt vmcnt(1)")
        else: a("s_waitcnt vmcnt(1)")
        X = 24 + 4 * p
        for e in range(0, 8, 2):
            a(f"v_cvt_pk_bf16_f32 v{72+e}, v{G+e}, v{G+e+1}")
            a(f"v_lshlrev_b32 v{G+e}, 16, v{72+e}\nv_and_b32 v{G+e+1}, 0xffff0000, v{72+e}")
            a(f"v_lshlrev_b32 v{80+e}, 16, v{X+e//2}\nv_and_b32 v{81+e}, 0xffff0000, v{X+e//2}")
            a(f"v_add_f32 v{G+e}, v{G+e}, v{80+e}\nv_add_f32 v{G+e+1}, v{G+e+1}, v{81+e}")
            a(f"v_cvt_pk_bf16_f32 v{104+4*p+e//2}, v{G+e}, v{G+e+1}")
        a(f"buffer_store_dwordx4 v[{104+4*p}:{107+4*p}], v14, s[20:23], s{34+p} offen")
```

```python
from asmlib import *
GEN_STRIDE = 264
GEN_W = 53 * GEN_STRIDE
L_GEN = 0
L_T = 4096
L_CP = 4 * GEN_W
CPS = 4160
L_XS = L_CP + 4 * CPS
L_END = L_XS + 2 * 4608
ZADDR = 8192 + 128
LN2 = 0.6931471805599453
LOG2E_LO = 1.925963033500011e-08

def cmul(a, dr, di, xr, xi, wr, wi, nwi):
    a(f"v_mul_f32 v{dr}, v{xr}, v{wr}")
    a(f"v_mul_f32 v{di}, v{xr}, v{wi}")
    a(f"v_fmac_f32 v{dr}, v{xi}, v{nwi}")
    a(f"v_fmac_f32 v{di}, v{xi}, v{wr}")

def exp_bf16r(a, dst, src, t0, t1):
    a(f"""
    v_mul_f32 v{t0}, {LOG2E}, v{src}
    v_fma_f32 v{t1}, v{src}, s60, -v{t0}
    v_fmac_f32 v{t1}, {f2u(LOG2E_LO)}, v{src}
    v_exp_f32 v{t0}, v{t0}
    v_mul_f32 v{t1}, {f2u(LN2)}, v{t1}
    v_fmac_f32 v{t0}, v{t0}, v{t1}
    v_cvt_pk_bf16_f32 v{t0}, v{t0}, v{t0}
    v_and_b32 v{dst}, 0xffff0000, v{t0}
    """)

def emit_kg_setup(a, wg="s2"):
    a(f"""
    s_load_dwordx4 s[36:39], s[0:1], {KA['logA']}
    s_load_dwordx4 s[40:43], s[0:1], {KA['Cre']}
    s_load_dwordx4 s[44:47], s[0:1], {KA['logdt']}
    s_load_dwordx2 s[48:49], s[0:1], {KA['ws']}
    v_lshrrev_b32 v1, 6, v0
    v_and_b32 v2, 63, v0
    s_mov_b32 s25, {wg}
    s_mov_b32 s60, {LOG2E}
    v_readfirstlane_b32 s24, v1
    v_lshlrev_b32 v3, 1, v0
    s_waitcnt lgkmcnt(0)
    """)
    a.srd(4, 36, SZ['logA']); a.srd(8, 38, SZ['Aim']); a.srd(12, 40, SZ['Cre']); a.srd(16, 42, SZ['Cim'])
    a.srd(20, 44, SZ['logdt']); a.srd(28, 46, SZ['D'])
    a(f"s_lshl_b32 s26, s25, 10\ns_lshl_b32 s27, s25, 2\nv_mov_b32 v4, 0")
    for c in range(2):
        b = 8 + 8 * c
        a(f"""
        s_add_u32 s50, s26, {512*c}
        s_add_u32 s51, s27, {2*c}
        buffer_load_ushort v{b}, v3, s[4:7], s50 offen
        buffer_load_ushort v{b+1}, v3, s[8:11], s50 offen
        buffer_load_ushort v{b+2}, v3, s[12:15], s50 offen
        buffer_load_ushort v{b+3}, v3, s[16:19], s50 offen
        buffer_load_ushort v{b+4}, v4, s[20:23], s51 offen
        buffer_load_ushort v{b+5}, v4, s[28:31], s51 offen
        """)
    for st in range(2):
        for k in range(9):
            d = 24 + 9 * st + k
            a(f"""
            v_lshlrev_b32 v5, 3, v0
            v_sub_u32 v5, {2049 - k - 2048*st}, v5
            v_cmp_gt_i32 vcc, 0, v5
            v_min_i32 v5, 2047, v5
            v_max_i32 v5, 0, v5
            v_cvt_f32_u32 v6, v5
            v_cvt_pk_bf16_f32 v6, v6, v6
            v_lshlrev_b32 v6, 16, v6
            v_cvt_u32_f32 v6, v6
            v_lshrrev_b32 v7, 8, v6
            v_lshlrev_b32 v7, 10, v7
            v_and_b32 v5, 7, v6
            v_lshl_add_u32 v7, v5, 7, v7
            v_bfe_u32 v5, v6, 3, 5
            v_lshl_add_u32 v7, v5, 2, v7
            v_mov_b32 v5, {ZADDR}
            v_cndmask_b32 v7, v7, v5, vcc
            v_add_u32 v{d}, {L_T}, v7
            """)

def emit_kg_channel(a, c):
    b = 8 + 8 * c
    A2, TH, DT2 = 42, 43, 44
    W1, W8, W256 = 46, 50, 54
    t0, t1, t2 = 58, 59, 60
    U = 64
    P0, P1 = 72, 74
    PK = 76
    vW = 45
    if c == 0:
        a("s_waitcnt vmcnt(6)")
    else:
        a("s_waitcnt vmcnt(0)")
    for k in range(6): a(f"v_lshlrev_b32 v{b+k}, 16, v{b+k}")
    exp_bf16r(a, DT2, b + 4, t0, t1)
    exp_bf16r(a, A2, b, t0, t1)
    a(f"""
    v_mul_f32 v{A2}, v{A2}, v{DT2}
    v_mul_f32 v{TH}, v{b+1}, v{DT2}
    v_mul_f32 v{A2}, {f2u(-1.4426950408889634)}, v{A2}
    v_mul_f32 v{TH}, 0.15915494, v{TH}
    v_add_f32 v{DT2}, v{DT2}, v{DT2}
    s_mul_i32 s50, s24, {GEN_W}
    v_lshlrev_b32 v{vW}, 2, v2
    v_add_u32 v{vW}, s50, v{vW}
    """)
    for (W, p) in ((W1, 1.0), (W8, 8.0), (W256, 256.0)):
        a(f"""
        v_mul_f32 v{t0}, {f2u(p)}, v{A2}
        v_mul_f32 v{t1}, {f2u(p)}, v{TH}
        v_exp_f32 v{t0}, v{t0}
        v_fract_f32 v{t1}, v{t1}
        s_nop 0
        v_cos_f32 v{t2}, v{t1}
        v_sin_f32 v{t1}, v{t1}
        s_nop 0
        v_mul_f32 v{W}, v{t0}, v{t2}
        v_mul_f32 v{W+1}, v{t0}, v{t1}
        v_sub_f32 v{W+2}, 0, v{W+1}
        """)
    def put(row, r, i):
        a(f"v_cvt_pk_bf16_f32 v{PK + (row % 4)}, v{r}, v{i}")
        a(f"ds_write_b32 v{vW}, v{PK + (row % 4)} offset:{row*GEN_STRIDE}")
    def xm(dr, di, xr, xi, W):
        cmul(a, dr, di, xr, xi, W, W + 2, W + 1)
    def ym(dr, di, xr, xi, W):
        cmul(a, dr, di, xr, xi, W, W + 1, W + 2)
    a(f"v_mov_b32 v{U}, v{b+2}\nv_sub_f32 v{U+1}, 0, v{b+3}")
    put(0, U, U + 1)
    cur = (U, U + 1)
    for j in range(1, 8):
        dst = (U + j, U + j + 1) if j % 2 == 0 else (P0, P0 + 1)
        xm(dst[0], dst[1], cur[0], cur[1], W1)
        put(j, dst[0], dst[1]); cur = dst
    R8, R10, RA, RB = 80, 82, 84, 86
    xm(R8, R8 + 1, U, U + 1, W256); put(8, R8, R8 + 1)
    xm(RA, RA + 1, U + 2, U + 3, W256); put(9, RA, RA + 1)
    xm(R10, R10 + 1, U + 4, U + 5, W256); put(10, R10, R10 + 1)
    xm(RA, RA + 1, U + 6, U + 7, W256); put(11, RA, RA + 1)
    xm(RA, RA + 1, R8, R8 + 1, W256); put(12, RA, RA + 1)
    xm(RB, RB + 1, R10, R10 + 1, W256); put(13, RB, RB + 1)
    xm(R8, R8 + 1, RA, RA + 1, W256); put(14, R8, R8 + 1)
    xm(R10, R10 + 1, RB, RB + 1, W256); put(15, R10, R10 + 1)
    cur = R8
    for row in range(16, 21):
        dst = RA if cur == R8 else R8
        xm(dst, dst + 1, cur, cur + 1, W256); put(row, dst, dst + 1); cur = dst
    a(f"v_mov_b32 v{P1}, 1.0\nv_mov_b32 v{P1+1}, 0")
    put(21, P1, P1 + 1)
    put(22, W8, W8 + 1)
    cur = W8
    for cidx in range(2, 32):
        dst = P0 if cur != P0 else P1
        ym(dst, dst + 1, cur, cur + 1, W8); put(21 + cidx, dst, dst + 1); cur = dst
    ACC = 88
    FA, FB = 104, 112
    a(f"""
    v_and_b32 v{t0}, 31, v2
    v_lshrrev_b32 v{t1}, 5, v2
    v_lshlrev_b32 v{t1}, 4, v{t1}
    v_add_u32 v{t1}, s50, v{t1}
    v_min_u32 v{t2}, 20, v{t0}
    v_mul_u32_u24 v{t2}, {GEN_STRIDE}, v{t2}
    v_add_u32 v{t2}, v{t2}, v{t1}
    v_mul_u32_u24 v{t0}, {GEN_STRIDE}, v{t0}
    v_add_u32 v{t0}, v{t0}, v{t1}
    """)
    for i in range(16): a(f"v_mov_b32 v{ACC+i}, 0")
    a("s_waitcnt lgkmcnt(0)")
    def rd(s):
        fa = FA + 4 * (s % 2); fb = FB + 4 * (s % 2)
        a(f"ds_read_b64 v[{fa}:{fa+1}], v{t2} offset:{32*s}")
        a(f"ds_read_b64 v[{fa+2}:{fa+3}], v{t2} offset:{32*s+8}")
        a(f"ds_read_b64 v[{fb}:{fb+1}], v{t0} offset:{21*GEN_STRIDE+32*s}")
        a(f"ds_read_b64 v[{fb+2}:{fb+3}], v{t0} offset:{21*GEN_STRIDE+32*s+8}")
    rd(0)
    for s in range(8):
        if s < 7:
            rd(s + 1); a("s_waitcnt lgkmcnt(4)")
        else:
            a("s_waitcnt lgkmcnt(0)")
        fa = FA + 4 * (s % 2); fb = FB + 4 * (s % 2)
        a(f"v_mfma_f32_32x32x16_bf16 v[{ACC}:{ACC+15}], v[{fa}:{fa+3}], v[{fb}:{fb+3}], v[{ACC}:{ACC+15}]")
    a(f"""
    v_and_b32 v{t0}, 31, v2
    v_lshlrev_b32 v{t0}, 2, v{t0}
    v_lshrrev_b32 v{t1}, 5, v2
    v_lshl_add_u32 v{t0}, v{t1}, 9, v{t0}
    v_add_u32 v{t0}, s50, v{t0}
    s_nop 15
    """)
    for r in range(12):
        a(f"ds_write_b32 v{t0}, v{ACC+r} offset:{(8*(r//4) + r%4)*128}")
    a("s_waitcnt lgkmcnt(0)\ns_barrier")
    a(f"""
    v_lshlrev_b32 v{t0}, 2, v0
    """)
    for g in range(3):
        for w in range(4):
            a(f"ds_read_b32 v{ACC+4*g+w}, v{t0} offset:{w*GEN_W + g*1024}")
    a(f"""
    v_lshrrev_b32 v{t1}, 5, v0
    v_and_b32 v{t2}, 31, v0
    v_lshlrev_b32 v{t2}, 2, v{t2}
    v_lshlrev_b32 v61, 8, v{t1}
    v_add_u32 v61, 1024, v61
    v_lshlrev_b32 v62, 9, v{t1}
    v_cmp_gt_u32 vcc, 4, v{t1}
    s_nop 1
    v_cndmask_b32 v61, v62, v61, vcc
    v_add_u32 v61, v61, v{t2}
    v_lshlrev_b32 v62, 10, v{t1}
    v_add_u32 v62, v62, v{t2}
    s_waitcnt lgkmcnt(0)
    """)
    for g in range(3):
        a(f"""
        v_add_f32 v{ACC+4*g}, v{ACC+4*g}, v{ACC+4*g+1}
        v_add_f32 v{ACC+4*g+2}, v{ACC+4*g+2}, v{ACC+4*g+3}
        v_add_f32 v{ACC+4*g}, v{ACC+4*g}, v{ACC+4*g+2}
        v_mul_f32 v{ACC+4*g}, v{ACC+4*g}, v{DT2}
        """)
    a(f"""
    ds_write_b32 v{t0}, v{ACC} offset:{L_T}
    ds_write_b32 v61, v{ACC+4} offset:{L_T}
    v_cmp_gt_u32 vcc, 5, v{t1}
    s_and_saveexec_b64 s[52:53], vcc
    ds_write_b32 v62, v{ACC+8} offset:{L_T+4096}
    s_mov_b64 exec, s[52:53]
    v_mov_b32 v61, 0
    v_mov_b32 v62, {L_T+ZADDR}
    ds_write_b32 v62, v61
    s_waitcnt lgkmcnt(0)
    s_barrier
    """)
    for st in range(2):
        G = 88
        if st == 1:
            a("v_cmp_gt_u32 vcc, 4, v0\ns_and_saveexec_b64 s[52:53], vcc")
            lab = a.label("exp")
            a(f"s_cbranch_execz {lab}")
        for k in range(9): a(f"ds_read_b32 v{G+k}, v{24+9*st+k}")
        a(f"v_lshlrev_b32 v{t0}, 4, v0\nv_add_u32 v{t0}, {L_CP}, v{t0}\ns_waitcnt lgkmcnt(0)")
        for k in range(4):
            a(f"v_cvt_pk_bf16_f32 v{104+k}, v{G+2*k+1}, v{G+2*k+2}")
            a(f"v_cvt_pk_bf16_f32 v{108+k}, v{G+2*k}, v{G+2*k+1}")
        a(f"ds_write_b128 v{t0}, v[104:107] offset:{c*2*CPS + 4096*st}")
        a(f"ds_write_b128 v{t0}, v[108:111] offset:{c*2*CPS + CPS + 4096*st}")
        if st == 1:
            a(f"{lab}:\ns_mov_b64 exec, s[52:53]")
    a("s_waitcnt lgkmcnt(0)\ns_barrier")

def emit_cv(a, coh=""):
    ACC = 8+16
    S = [64, 128]
    vAa, vBa, vT = 4, 5, 6
    a(f"""
    s_lshr_b32 s50, s24, 1
    s_and_b32 s51, s24, 1
    v_and_b32 v56, 15, v2
    v_lshrrev_b32 v57, 4, v2
    v_and_b32 v58, 1, v56
    v_mul_u32_u24 v58, {CPS}, v58
    v_and_b32 v59, 14, v56
    v_lshlrev_b32 v59, 1, v59
    v_sub_u32 v58, v58, v59
    v_lshl_add_u32 v58, v57, 4, v58
    s_mul_i32 s52, s50, {2*CPS}
    s_lshl_b32 s53, s51, 8
    s_sub_u32 s52, s52, s53
    s_add_u32 s52, s52, {L_CP + 2*2032}
    v_add_u32 v{vAa}, s52, v58
    v_lshlrev_b32 v58, 5, v56
    v_lshl_add_u32 v58, v57, 4, v58
    s_mul_i32 s52, s50, 4608
    s_sub_u32 s52, s52, s53
    s_add_u32 s52, s52, {L_XS + 2*(256-16) - 256}
    v_add_u32 v{vBa}, s52, v58
    """)
    def loads(rr, S0):
        ops = []
        for j in range(8):
            off = 256 + 512 * j - 64 * rr
            ops.append(f"ds_read_b128 v[{S0+4*j}:{S0+4*j+3}], v{vBa} offset:{off}")
        for q in range(8):
            d = S0 + 32 + 4 * q
            ops.append(f"v_subrev_u32 v{vT}, {64*rr+512*q}, v{vAa}\nds_read2_b32 v[{d}:{d+1}], v{vT} offset0:0 offset1:1\nds_read2_b32 v[{d+2}:{d+3}], v{vT} offset0:2 offset1:3")
        return ops
    for i in range(32): a(f"v_mov_b32 v{ACC+i}, 0")
    for op in loads(0, S[0]): a(op)
    for rr in range(4):
        S0 = S[rr % 2]
        a("s_waitcnt lgkmcnt(0)")
        nxt = loads(rr + 1, S[(rr + 1) % 2]) if rr < 3 else []
        n = 0
        for q in range(8):
            for cb in range(q, 8):
                A = S0 + 32 + 4 * q; B = S0 + 4 * (cb - q)
                a(f"v_mfma_f32_16x16x32_bf16 v[{ACC+4*cb}:{ACC+4*cb+3}], v[{A}:{A+3}], v[{B}:{B+3}], v[{ACC+4*cb}:{ACC+4*cb+3}]")
                n += 1
                if n % 2 == 0 and nxt: a(nxt.pop(0))
        while nxt: a(nxt.pop(0))
    a(f"""
    s_nop 7
    v_lshlrev_b32 v56, 4, v2
    s_lshl_b32 s52, s24, 12
    v_add_u32 v57, s52, v56
    s_xor_b32 s53, s24, 1
    s_lshl_b32 s53, s53, 12
    v_add_u32 v58, s53, v56
    s_cmp_eq_u32 s51, 0
    """)
    l1 = a.label("cv"); l2 = a.label("cv")
    a(f"s_cbranch_scc0 {l1}")
    for k in range(4): a(f"ds_write_b128 v57, v[{ACC+16+4*k}:{ACC+16+4*k+3}] offset:{1024*k}")
    a(f"s_branch {l2}\n{l1}:")
    for k in range(4): a(f"ds_write_b128 v57, v[{ACC+4*k}:{ACC+4*k+3}] offset:{1024*k}")
    for k in range(16): a(f"v_mov_b32 v{ACC+k}, v{ACC+16+k}")
    a(f"{l2}:\ns_waitcnt lgkmcnt(0)\ns_barrier")
    for k in range(4): a(f"ds_read_b128 v[{64+4*k}:{64+4*k+3}], v58 offset:{1024*k}")
    a(f"""
    v_and_b32 v56, 15, v2
    v_lshrrev_b32 v57, 4, v2
    v_lshlrev_b32 v56, 5, v56
    v_lshl_add_u32 v56, v57, 3, v56
    s_lshl_b32 s52, s51, 11
    v_add_u32 v59, s52, v56
    s_mul_i32 s53, s50, 4608
    s_add_u32 s53, s53, {L_XS + 512}
    v_add_u32 v57, s53, v59
    """)
    for k in range(4): a(f"ds_read_b64 v[{80+2*k}:{80+2*k+1}], v57 offset:{512*k}")
    a(f"""
    s_cmp_eq_u32 s50, 0
    s_cselect_b64 vcc, -1, 0
    s_lshl_b32 s52, s25, 1
    s_add_u32 s52, s52, s50
    s_lshl_b32 s52, s52, 12
    v_cndmask_b32 v60, v21, v13, vcc
    s_waitcnt lgkmcnt(0)
    """)
    for k in range(4):
        for e in range(4): a(f"v_add_f32 v{ACC+4*k+e}, v{ACC+4*k+e}, v{64+4*k+e}")
        X = 80 + 2 * k
        a(f"""
        v_lshlrev_b32 v90, 16, v{X}
        v_and_b32 v91, 0xffff0000, v{X}
        v_lshlrev_b32 v92, 16, v{X+1}
        v_and_b32 v93, 0xffff0000, v{X+1}
        v_mul_f32 v90, v90, v60
        v_mul_f32 v91, v91, v60
        v_mul_f32 v92, v92, v60
        v_mul_f32 v93, v93, v60
        v_cvt_pk_bf16_f32 v94, v90, v91
        v_cvt_pk_bf16_f32 v95, v92, v93
        v_cvt_pk_bf16_f32 v96, v{ACC+4*k}, v{ACC+4*k+1}
        v_cvt_pk_bf16_f32 v97, v{ACC+4*k+2}, v{ACC+4*k+3}
        v_lshlrev_b32 v90, 16, v94
        v_and_b32 v91, 0xffff0000, v94
        v_lshlrev_b32 v92, 16, v95
        v_and_b32 v93, 0xffff0000, v95
        v_lshlrev_b32 v98, 16, v96
        v_and_b32 v99, 0xffff0000, v96
        v_lshlrev_b32 v100, 16, v97
        v_and_b32 v101, 0xffff0000, v97
        v_add_f32 v90, v90, v98
        v_add_f32 v91, v91, v99
        v_add_f32 v92, v92, v100
        v_add_f32 v93, v93, v101
        v_cvt_pk_bf16_f32 v{102+2*k}, v90, v91
        v_cvt_pk_bf16_f32 v{103+2*k}, v92, v93
        buffer_store_dwordx2 v[{102+2*k}:{103+2*k}], v59, s[32:35], s52 offen offset:{512*k} {coh}
        """)

def emit_xs_zero(a):
    a(f"""
    v_mov_b32 v5, 0
    v_lshrrev_b32 v6, 7, v0
    v_mul_u32_u24 v6, 4608, v6
    v_and_b32 v7, 127, v0
    v_lshl_add_u32 v6, v7, 2, v6
    v_add_u32 v6, {L_XS}, v6
    ds_write_b32 v6, v5
    """)
def emit_xs_load(a, coh=""):
    a(f"""
    s_lshl_b32 s52, s25, 13
    v_lshlrev_b32 v4, 5, v0
    buffer_load_dwordx4 v[88:91], v4, s[56:59], s52 offen {coh}
    buffer_load_dwordx4 v[92:95], v4, s[56:59], s52 offen offset:16 {coh}
    v_lshrrev_b32 v6, 7, v0
    v_mul_u32_u24 v6, 512, v6
    v_add_u32 v6, v6, v4
    v_add_u32 v6, {L_XS + 512}, v6
    s_waitcnt vmcnt(0)
    ds_write_b128 v6, v[88:91]
    ds_write_b128 v6, v[92:95] offset:16
    s_waitcnt lgkmcnt(0)
    s_barrier
    """)
```

```python
from asmlib import *
FG1 = 0; FCV = 0x8000
SPIN = 200000
def nonce_make(a):
    lab = a.label("nm")
    a(f"""
    s_cmp_lg_u32 s2, 0
    s_cbranch_scc1 {lab}
    s_load_dwordx2 s[62:63], s[0:1], {KA['dbg']}
    s_memrealtime s[60:61]
    s_waitcnt lgkmcnt(0)
    s_or_b32 s60, s60, 1
    v_mov_b32 v1, s60
    v_mov_b32 v2, 0
    v_cmp_eq_u32 vcc, 0, v0
    s_and_saveexec_b64 s[60:61], vcc
    s_cbranch_execz {lab}_r
    global_store_dword v2, v1, s[62:63] sc1
    {lab}_r:
    s_mov_b64 exec, s[60:61]
    {lab}:
    """)
def flag_srd(a, s):
    a(f"s_load_dwordx2 s[62:63], s[0:1], {KA['ws']}\ns_waitcnt lgkmcnt(0)")
    a.srd(s, 62, 0x10000, WS_FLAG)
def nonce_get(a, sN, vt):
    lab = a.label("ng")
    a(f"""
    s_load_dwordx2 s[62:63], s[0:1], {KA['dbg']}
    v_mov_b32 v{vt}, 0
    s_mov_b32 s61, {SPIN}
    s_waitcnt lgkmcnt(0)
    {lab}:
    global_load_dword v{vt+1}, v{vt}, s[62:63] sc1
    s_waitcnt vmcnt(0)
    v_readfirstlane_b32 s{sN}, v{vt+1}
    s_sub_u32 s61, s61, 1
    s_cbranch_scc1 {lab}_d
    s_cmp_eq_u32 s{sN}, 0
    s_cbranch_scc1 {lab}
    {lab}_d:
    """)
def signal(a, sF, sOffExpr, sN, vt):
    lab = a.label("sg")
    a(f"""
    s_waitcnt vmcnt(0)
    s_barrier
    v_cmp_eq_u32 vcc, 0, v0
    s_and_saveexec_b64 s[60:61], vcc
    s_cbranch_execz {lab}
    v_mov_b32 v{vt}, s{sN}
    v_mov_b32 v{vt+1}, 0
    buffer_store_dword v{vt}, v{vt+1}, s[{sF}:{sF+3}], {sOffExpr} offen sc1
    {lab}:
    s_mov_b64 exec, s[60:61]
    """)
def wait_flags(a, sF, sBase, n, stride, sN, sw, vt):
    lab = a.label("wf")
    a(f"""
    s_cmp_lg_u32 s{sw}, 0
    s_cbranch_scc1 {lab}_d
    v_min_u32 v{vt}, {n-1}, v2
    v_mul_u32_u24 v{vt}, {stride}, v{vt}
    s_mov_b32 s61, {SPIN}
    {lab}:
    buffer_load_dword v{vt+1}, v{vt}, s[{sF}:{sF+3}], {sBase} offen sc1
    s_sub_u32 s61, s61, 1
    s_cbranch_scc1 {lab}_d
    s_waitcnt vmcnt(0)
    v_cmp_ne_u32 vcc, s{sN}, v{vt+1}
    s_cbranch_vccnz {lab}
    {lab}_d:
    s_barrier
    """)
```

```python
import sys
from asmlib import *
from role_g1 import emit_g1
from role_kc import *
from role_g2 import *
from sync import *
ST = len(sys.argv) > 2 and sys.argv[2] == "1"
MK = stamp_mark if ST else (lambda a, i: None)
K = NAME + "_kernel"
hdr = open("cdna_kernels/" + NAME + ".s.ref").read().split("; Override")[0]
a = Asm()
a(f"; @launch grid=(448,1,1) block=(256,1,1) lds=81920")
a('.amdgcn_target "amdgcn-amd-amdhsa--gfx950"\n.text')
a(kernel_header(K))
a("s_cmp_ge_u32 s2, 448\ns_cbranch_scc1 L_end")
if ST: stamp_begin(a)
nonce_make(a)
a("s_cmp_ge_u32 s2, 224\ns_cbranch_scc1 L_typeA")
SN = 69; SF = 44
emit_g1(a, coh="sc1", mark=MK)
MK(a, 6)
flag_srd(a, SF)
nonce_get(a, SN, 16)
a("s_lshl_b32 s33, s25, 10\ns_lshl_b32 s34, s26, 6\ns_add_u32 s33, s33, s34")
signal(a, SF, "s33", SN, 16)
MK(a, 7)
emit_g2_setup(a)
def wact(a):
    a("s_lshr_b32 s34, s26, 1\ns_lshl_b32 s34, s34, 10")
    wait_flags(a, SF, "s34", 14, 64, SN, 24, 8)
    MK(a, 8)
def wst(a):
    a(f"s_lshl_b32 s34, s27, 11\ns_add_u32 s34, s34, {FCV}")
    wait_flags(a, SF, "s34", 32, 64, SN, 24, 32)
emit_g2(a, coh="sc1", wait_act=wact, wait_st=wst, mark=lambda a, i: MK(a, {3: 1, 4: 2}[i]))
a("s_branch L_fin")
a("L_typeA:\ns_sub_u32 s2, s2, 224")
emit_kg_setup(a)
a.srd(32, 48, 1835008, WS_ST); a.srd(56, 48, 1835008, WS_XNT)
emit_xs_zero(a)
MK(a, 3)
emit_kg_channel(a, 0)
MK(a, 4)
emit_kg_channel(a, 1)
MK(a, 5)
flag_srd(a, SF)
nonce_get(a, SN, 88)
a(f"s_lshr_b32 s54, s25, 4\ns_lshl_b32 s54, s54, 6")
wait_flags(a, SF, "s54", 16, 1024, SN, 24, 88)
MK(a, 6)
emit_xs_load(a, coh="sc1")
MK(a, 7)
emit_cv(a, coh="sc1")
MK(a, 8)
a(f"s_lshl_b32 s54, s25, 6\ns_add_u32 s54, s54, {FCV}")
signal(a, SF, "s54", SN, 88)
a("s_add_u32 s2, s2, 224")
a("L_fin:")
if ST: stamp_end(a, 0)
a("L_end:\ns_endpgm")
a('.section .rodata,"a"')
a(kernel_desc(K, 256 if ST else 192))
open(sys.argv[1], "w").write(hdr + a.text())
```

```python
from asmlib import *
import os
XV = os.environ.get('XV', '')

def emit_g1(a, coh="", wg="s2", done=None, mark=lambda a, i: None, prefetch=True, extra_load=None, after_loop=None, mid_sig=None, mid_j=2, ext=None):
    ACC = 64
    AS = [16, 32]; BS = [48, 52]
    vA = [4, 5, 6, 7]; vB = [8, 9]; vXo = 10; vWo = 11
    vA4 = [132, 133, 134, 135]; vB4 = [136, 137]; vXo2 = 138; vWo2 = 139
    NST = 5
    NEX = 2 if ext else 1
    GR = 140; SX = 156; CS = 160; SEL = 164
    vSum, vSq, vCs = 12, 13, 14
    vOnes = 15
    vB1 = 60
    sU, sW1, sACT, sXNT, sBB = 4, 8, 12, 16, 20
    sw, srb, sfs, sCC, sXb, sWb, sM, sT0, sT1 = 24, 25, 26, 27, 28, 29, 30, 31, 32
    a(f"""
    s_load_dwordx2 s[36:37], s[0:1], {KA['u']}
    s_load_dwordx2 s[38:39], s[0:1], {KA['w1']}
    s_load_dwordx2 s[40:41], s[0:1], {KA['b1']}
    s_load_dwordx2 s[42:43], s[0:1], {KA['ws']}
    v_lshrrev_b32 v1, 6, v0
    v_and_b32 v2, 63, v0
    s_and_b32 s{sT0}, {wg}, 7
    s_lshr_b32 s{sT1}, {wg}, 3
    v_readfirstlane_b32 s{sw}, v1
    s_and_b32 s{srb}, s{sT0}, 3
    s_lshl_b32 s{srb}, s{srb}, 2
    s_and_b32 s33, s{sT1}, 3
    s_add_u32 s{srb}, s{srb}, s33
    s_lshr_b32 s{sT0}, s{sT0}, 2
    s_mul_i32 s{sT0}, s{sT0}, 7
    s_lshr_b32 s{sT1}, s{sT1}, 2
    s_add_u32 s{sfs}, s{sT0}, s{sT1}
    """)
    a(f"""
    v_lshrrev_b32 v3, 2, v2
    v_mul_u32_u24 v{vXo}, 896, v3
    v_and_b32 v56, 3, v2
    v_lshrrev_b32 v57, 4, v2
    v_and_b32 v57, 3, v57
    v_xor_b32 v58, v56, v57
    v_lshl_add_u32 v{vXo}, v58, 4, v{vXo}
    v_lshrrev_b32 v58, 4, v2
    v_mul_u32_u24 v{vWo}, 3584, v58
    v_lshrrev_b32 v59, 2, v2
    v_and_b32 v59, 3, v59
    v_xor_b32 v59, v59, v57
    v_lshl_add_u32 v{vWo}, v59, 6, v{vWo}
    v_lshl_add_u32 v{vWo}, v56, 4, v{vWo}
    s_waitcnt lgkmcnt(0)
    """)
    a.srd(sU, 36, SZ['u']); a.srd(sW1, 38, SZ['w1']); a.srd(sBB, 40, SZ['b1'])
    a.srd(sACT, 42, 7340032, WS_ACT); a.srd(sXNT, 42, 1835008, WS_XNT)
    a(f"""
    s_mul_i32 s{sXb}, s{srb}, 114688
    s_mul_i32 s{sT0}, s{sw}, 28672
    s_add_u32 s{sXb}, s{sXb}, s{sT0}
    s_mul_i32 s{sWb}, s{sw}, 28672
    s_lshl_b32 s{sT0}, s{sfs}, 8
    s_add_u32 s{sWb}, s{sWb}, s{sT0}
    s_lshl_b32 s{sM}, s{sw}, 11
    s_add_u32 s{sCC}, s{sfs}, 1
    s_cmp_eq_u32 s{sCC}, 14
    s_cselect_b32 s{sCC}, 0, s{sCC}
    """)
    a(f"""
    v_add_u32 v{vXo2}, 14336, v{vXo}
    v_add_u32 v{vWo2}, 14336, v{vWo}
    s_lshl_b32 s{sT0}, s{sCC}, 6
    s_add_u32 s48, s{sXb}, s{sT0}
    s_mul_i32 s{sT0}, s{sCC}, 114688
    s_add_u32 s49, s{sWb}, s{sT0}
    s_add_u32 s50, s{sXb}, {14*64}
    """)
    def dma_parts(stage):
        return [
        (f"s_add_u32 m0, s{sM}, {stage*16384}", f"buffer_load_dwordx4 v{vXo}, s[{sU}:{sU+3}], s48 offen lds"),
        (f"s_add_u32 m0, s{sM}, {stage*16384+1024}", f"buffer_load_dwordx4 v{vXo2}, s[{sU}:{sU+3}], s48 offen lds\ns_add_u32 s48, s48, 64"),
        (f"s_add_u32 m0, s{sM}, {stage*16384+8192}", f"buffer_load_dwordx4 v{vWo}, s[{sW1}:{sW1+3}], s49 offen lds"),
        (f"s_add_u32 m0, s{sM}, {stage*16384+8192+1024}", f"buffer_load_dwordx4 v{vWo2}, s[{sW1}:{sW1+3}], s49 offen lds\ns_add_u32 s49, s49, 114688\ns_cmp_eq_u32 s48, s50\ns_cselect_b32 s48, s{sXb}, s48\ns_cselect_b32 s49, s{sWb}, s49"),
        ]
    def dma(stage):
        for m, l in dma_parts(stage): a(m); a("s_nop 0"); a(l)
    a(f"""
    v_and_b32 v56, 31, v2
    v_lshlrev_b32 v56, 1, v56
    s_lshl_b32 s{sT0}, s{sfs}, 8
    """)
    for j in range(4):
        a(f"""
        s_add_u32 s{sT1}, s{sw}, {j}
        s_and_b32 s{sT1}, s{sT1}, 3
        s_lshl_b32 s{sT1}, s{sT1}, 6
        s_add_u32 s{sT1}, s{sT1}, s{sT0}
        buffer_load_ushort v{vB1+j}, v56, s[{sBB}:{sBB+3}], s{sT1} offen
        """)
    NPF = 0; NPF0 = 0
    def pf_old():
        a(f"""
        v_lshrrev_b32 v56, 1, v2
        v_and_b32 v57, 1, v2
        v_mul_u32_u24 v58, 896, v56
        v_lshl_add_u32 v58, v57, 7, v58
        v_mul_u32_u24 v59, 3584, v56
        v_lshl_add_u32 v59, v57, 7, v59
        s_mul_i32 s{sT1}, s{sw}, {112*3584}
        s_lshl_b32 s33, s{sfs}, 8
        s_add_u32 s{sT1}, s{sT1}, s33
        """)
        for i in range(4):
            a(f"s_add_u32 s33, s{sXb}, {256*i}\nbuffer_load_dword v128, v58, s[{sU}:{sU+3}], s33 offen")
            a(f"s_add_u32 s33, s{sT1}, {32*3584*i}\nbuffer_load_dword v128, v59, s[{sW1}:{sW1+3}], s33 offen")
    def pf_new():
        a(f"""
        v_mul_u32_u24 v58, 896, v0
        v_mov_b32 v59, 0x7ffffff0
        v_cmp_gt_u32 vcc, 128, v0
        s_cmp_ge_u32 s{sfs}, 7
        s_cselect_b32 s33, 7, 0
        s_sub_u32 s33, s{sfs}, s33
        s_lshl_b32 s33, s33, 7
        s_mul_i32 s34, s{srb}, 114688
        s_add_u32 s33, s33, s34
        v_cndmask_b32 v58, v59, v58, vcc
        v_lshrrev_b32 v56, 1, v0
        v_and_b32 v57, 1, v0
        v_mul_u32_u24 v56, 3584, v56
        v_lshl_add_u32 v56, v57, 7, v56
        v_cmp_gt_u32 vcc, 224, v0
        s_and_b32 s34, s{srb}, 3
        s_mul_i32 s34, s34, {112*3584}
        s_lshl_b32 s35, s{sfs}, 8
        s_add_u32 s34, s34, s35
        v_cndmask_b32 v56, v59, v56, vcc
        buffer_load_dword v128, v58, s[{sU}:{sU+3}], s33 offen
        buffer_load_dword v128, v56, s[{sW1}:{sW1+3}], s34 offen
        """)
    if prefetch == 3:
        pf_old(); a("s_waitcnt vmcnt(0)\ns_barrier"); mark(a, 7)
        for c in range(NST): dma(c)
    elif prefetch == 2:
        dma(0); dma(1); pf_new(); dma(2); dma(3); dma(4); NPF0 = 2
    else:
        for c in range(NST): dma(c)
    if os.environ.get('TOUCH', '0') == '1':
        a(f"""
        s_lshl_b32 s33, s{srb}, 2
        s_add_u32 s33, s33, s{sw}
        s_mul_i32 s33, s33, 112
        s_lshl_b32 s34, s{sfs}, 3
        s_add_u32 s33, s33, s34
        s_lshl_b32 s33, s33, 10
        v_lshlrev_b32 v56, 7, v2
        s_lshl_b32 s34, s{sfs}, 17
        s_lshl_b32 s35, s{srb}, 8
        s_add_u32 s34, s34, s35
        v_lshrrev_b32 v57, 3, v0
        v_lshlrev_b32 v57, 12, v57
        buffer_load_dword v128, v56, s[{sACT}:{sACT+3}], s33 offen sc1
        buffer_load_dword v128, v57, s[{sXNT}:{sXNT+3}], s34 offen sc1
        """)
        NPF0 += 2
    a(f"""
    v_and_b32 v56, 31, v2
    v_lshrrev_b32 v57, 5, v2
    v_lshrrev_b32 v58, 2, v56
    v_and_b32 v58, 3, v58
    v_xor_b32 v58, v58, v57
    v_lshlrev_b32 v58, 4, v58
    v_lshl_add_u32 v58, v56, 6, v58
    s_lshl_b32 s{sT0}, s{sw}, 11
    v_add_u32 v{vB[0]}, s{sT0}, v58
    v_xor_b32 v{vB[1]}, 32, v{vB[0]}
    v_and_b32 v56, 15, v2
    v_lshrrev_b32 v58, 2, v56
    v_and_b32 v59, 3, v56
    v_lshl_add_u32 v1, v57, 3, v58
    v_lshlrev_b32 v1, 8, v1
    v_lshl_add_u32 v1, v59, 3, v1
    v_lshrrev_b32 v3, 4, v2
    v_and_b32 v3, 1, v3
    v_lshl_add_u32 v1, v3, 5, v1
    """)
    for j in range(4):
        a(f"""
        s_add_u32 s{sT1}, s{sw}, {j}
        s_and_b32 s{sT1}, s{sT1}, 3
        v_xor_b32 v3, s{sT1}, v58
        v_lshl_add_u32 v{vA[j]}, v3, 6, v1
        """)
    a(f"v_mov_b32 v{vSum}, 0\nv_mov_b32 v{vSq}, 0\nv_mov_b32 v{vCs}, 0\nv_mov_b32 v{vOnes}, 0x3f803f80")
    for i in range(64): a(f"v_mov_b32 v{ACC+i}, 0")
    for i in range(24): a(f"v_mov_b32 v{GR+i}, 0")
    a(f"""
    v_and_b32 v56, 3, v2
    v_lshrrev_b32 v57, 2, v2
    v_lshrrev_b32 v58, 4, v2
    v_xor_b32 v57, v57, v58
    v_and_b32 v57, 1, v57
    v_or_b32 v56, v56, v57
    v_cmp_eq_u32 vcc, 0, v56
    s_nop 1
    v_cndmask_b32 v{SEL}, 0, v{vOnes}, vcc
    v_cndmask_b32 v{SEL+1}, 0, v{vOnes}, vcc
    v_cndmask_b32 v{SEL+2}, 0, v{vOnes}, vcc
    v_cndmask_b32 v{SEL+3}, 0, v{vOnes}, vcc
    """)
    for j in range(4): a(f"v_add_u32 v{vA4[j]}, 65536, v{vA[j]}")
    for j in range(2): a(f"v_add_u32 v{vB4[j]}, 65536, v{vB[j]}")
    def read_list(sig):
        c, s = sig // 2, sig % 2
        stg = c % NST
        st = stg * 16384
        va, vb = vA, vB
        if stg == 4: st -= 65536; va, vb = vA4, vB4
        A = AS[sig % 2]; B = BS[sig % 2]
        L = [f"ds_read_b128 v[{B}:{B+3}], v{vb[s]} offset:{st}"]
        for j in range(4):
            for q in range(2):
                L.append(f"ds_read_b64_tr_b16 v[{A+4*j+2*q}:{A+4*j+2*q+1}], v{va[j]} offset:{st+8192+s*4096+q*1024}")
        return L
    a(f"s_waitcnt vmcnt({4*(NST-1)+NPF0})\ns_barrier")
    mark(a, 3)
    for r in read_list(0): a(r)
    for sig in range(28):
        nxt = sig + 1
        A = AS[sig % 2]; B = BS[sig % 2]
        R = read_list(nxt) if nxt < 28 else []
        D = []
        bar = False
        if nxt < 28 and nxt % 2 == 0:
            c = nxt // 2
            newer = min(13, c + NST - 2) - c
            nx = NEX if (extra_load and c + NST - 2 >= 13 and c - 1 + NST - 1 >= 13 and c > 13 - NST + 1) else 0
            a(f"s_waitcnt vmcnt({4*newer + nx}) lgkmcnt(0)" + ("" if 'b' in XV else "\ns_barrier"))
            bar = True
            if c + NST - 1 < 14: D = dma_parts((c + NST - 1) % NST)
            if c + NST - 1 == 13 and extra_load: D = D + ["EXTRA"]
        Rg = [R[0:3], R[3:6], R[6:9], []]
        EX = "EXTRA" in D
        D = [d for d in D if d != "EXTRA"]
        issued = 0
        for j in range(4):
            if not bar:
                pend_old = 9 - (3 + 2 * j)
                a(f"s_waitcnt lgkmcnt({pend_old + issued})")
            a(f"v_mfma_f32_32x32x16_bf16 v[{ACC+16*j}:{ACC+16*j+15}], v[{A+4*j}:{A+4*j+3}], v[{B}:{B+3}], v[{ACC+16*j}:{ACC+16*j+15}]")
            for r in Rg[j]:
                if 'r' not in XV: a(r)
                issued += 1
            if D: a(D[j][0])
            if j == 0 and not ext: a(f"v_mfma_f32_16x16x32_bf16 v[{SX}:{SX+3}], v[{SEL}:{SEL+3}], v[{B}:{B+3}], v[{SX}:{SX+3}]")
            if j == 1: a(f"v_mfma_f32_16x16x32_bf16 v[{CS}:{CS+3}], v[{SEL}:{SEL+3}], v[{A}:{A+3}], v[{CS}:{CS+3}]")
            if j == 2 and not ext: a(f"v_mfma_f32_32x32x16_bf16 v[{GR}:{GR+15}], v[{B}:{B+3}], v[{B}:{B+3}], v[{GR}:{GR+15}]")
            if (j == 3 or (ext and j != 1)) and D: a("s_nop 0")
            if D: a(D[j][1])
            if j == 3 and EX: extra_load(a)
    mark(a, 4)
    if after_loop: after_loop(a)
    if not ext:
        a(f"""
        s_mov_b32 s52, 0xaaaaaaaa
        s_mov_b32 s53, 0xaaaaaaaa
        s_mov_b32 s54, 0xcccccccc
        s_mov_b32 s55, 0xcccccccc
        s_mov_b32 s56, 0xff00ff00
        s_mov_b32 s57, 0xff00ff00
        s_mov_b32 s58, 0xffff0000
        s_mov_b32 s59, 0xffff0000
        s_nop 7
        s_nop 7
        """)
        for i in range(8): a(f"v_cndmask_b32 v{GR+2*i}, v{GR+2*i}, v{GR+2*i+1}, s[52:53]")
        for i in range(4): a(f"v_cndmask_b32 v{GR+4*i}, v{GR+4*i}, v{GR+4*i+2}, s[54:55]")
        for i in range(2): a(f"v_cndmask_b32 v{GR+8*i}, v{GR+8*i}, v{GR+8*i+4}, s[56:57]")
        a(f"""
        v_cndmask_b32 v{GR}, v{GR}, v{GR+8}, s[58:59]
        s_mov_b32 s52, 0xf0f0f0f0
        v_mov_b32 v56, v{GR}
        s_mov_b32 s53, 0xf0f0f0f0
        v_mov_b32 v{vSum}, v{SX}
        v_mov_b32 v{vCs}, v{CS}
        v_permlane32_swap_b32 v{GR}, v56
        s_nop 1
        v_cndmask_b32 v{vSq}, v{GR}, v56, s[52:53]
        v_and_b32 v56, 31, v2
        v_lshlrev_b32 v56, 2, v56
        s_lshl_b32 s{sT0}, s{sw}, 7
        s_add_u32 s{sT0}, s{sT0}, 65536
        v_add_u32 v56, s{sT0}, v56
        ds_write_b32 v56, v{vCs}
        v_mul_f32 v{vSum}, {f2u(1.0/448)}, v{vSum}
        v_mul_f32 v{vSq}, {f2u(1.0/448)}, v{vSq}
        v_fma_f32 v{vSq}, -v{vSum}, v{vSum}, v{vSq}
        v_max_f32 v{vSq}, 0, v{vSq}
        v_cvt_pk_bf16_f32 v57, v{vSum}, v{vSq}
        v_and_b32 v58, 0xffff0000, v57
        v_lshlrev_b32 v{vSum}, 16, v57
        v_add_f32 v58, {f2u(1e-5)}, v58
        v_cvt_pk_bf16_f32 v58, v58, v58
        v_and_b32 v58, 0xffff0000, v58
        v_sqrt_f32 v58, v58
        s_nop 0
        v_cvt_pk_bf16_f32 v58, v58, v58
        v_and_b32 v{vSq}, 0xffff0000, v58
        v_rcp_f32 v{vCs}, v{vSq}
        s_waitcnt lgkmcnt(0)
        s_barrier
        """)
    else:
        a(f"""
        s_nop 7
        v_and_b32 v56, 31, v2
        v_lshlrev_b32 v56, 2, v56
        s_lshl_b32 s{sT0}, s{sw}, 7
        s_add_u32 s{sT0}, s{sT0}, 65536
        v_add_u32 v56, s{sT0}, v56
        v_lshlrev_b32 v{vSum}, 16, v{ext}
        v_and_b32 v{vSq}, 0xffff0000, v{ext}
        s_nop 4
        ds_write_b32 v56, v{CS}
        v_rcp_f32 v{vCs}, v{vSq}
        s_waitcnt lgkmcnt(0)
        s_barrier
        """)
    vM, vDen, vR = vSum, vSq, vCs
    a(f"v_and_b32 v56, 31, v2\nv_lshlrev_b32 v56, 2, v56")
    for j in range(4):
        a(f"""
        s_add_u32 s{sT1}, s{sw}, {j}
        s_and_b32 s{sT1}, s{sT1}, 3
        s_lshl_b32 s{sT1}, s{sT1}, 7
        s_add_u32 s{sT1}, s{sT1}, 65536
        v_add_u32 v57, s{sT1}, v56
        ds_read_b32 v{16+4*j}, v57
        """)
    if not ext:
        a(f"""
        v_lshrrev_b32 v57, 5, v2
        v_mul_u32_u24 v57, {8*272}, v57
        v_and_b32 v58, 31, v2
        v_lshl_add_u32 v57, v58, 1, v57
        s_lshl_b32 s{sT0}, s{sw}, 6
        v_add_u32 v57, s{sT0}, v57
        """)
        for s in range(2):
            for i in range(4):
                src = BS[s] + i
                a(f"""
                v_lshlrev_b32 v32, 16, v{src}
                v_and_b32 v33, 0xffff0000, v{src}
                v_sub_f32 v32, v32, v{vM}
                v_sub_f32 v33, v33, v{vM}
                v_cvt_pk_bf16_f32 v34, v32, v33
                v_lshlrev_b32 v32, 16, v34
                v_and_b32 v33, 0xffff0000, v34
                v_mul_f32 v32, v32, v{vR}
                v_mul_f32 v33, v33, v{vR}
                v_cvt_pk_bf16_f32 v{36+4*s+i}, v32, v33
                """)
                a(f"ds_write_b16 v57, v{36+4*s+i} offset:{(16*s+2*i)*272}")
                a(f"ds_write_b16_d16_hi v57, v{36+4*s+i} offset:{(16*s+2*i+1)*272}")
    a(f"""
    v_sub_f32 v32, 0, v{vM}
    v_cvt_pk_bf16_f32 v48, v32, v32
    v_lshrrev_b32 v49, 16, v{vDen}
    v_mov_b32 v50, 0
    v_mov_b32 v51, 0
    v_cmp_gt_u32 vcc, 32, v2
    s_nop 1
    v_cndmask_b32 v48, 0, v48, vcc
    v_cndmask_b32 v49, 0, v49, vcc
    s_waitcnt lgkmcnt(16)
    """.replace("lgkmcnt(16)", "lgkmcnt(0)"))
    for j in range(4):
        A = 16 + 4 * j
        a(f"""
        v_cvt_pk_bf16_f32 v32, v{A}, v{A}
        v_lshlrev_b32 v32, 16, v32
        v_sub_f32 v33, v{A}, v32
        v_cvt_pk_bf16_f32 v{A}, v32, v33
        v_mov_b32 v{A+1}, v{vB1+j}
        v_mov_b32 v{A+2}, 0
        v_mov_b32 v{A+3}, 0
        """)
    a("s_nop 1")
    for j in range(4):
        A = 16 + 4 * j
        a(f"v_mfma_f32_32x32x16_bf16 v[{ACC+16*j}:{ACC+16*j+15}], v[{A}:{A+3}], v[48:51], v[{ACC+16*j}:{ACC+16*j+15}]")
    if not ext:
        a(f"""
        s_waitcnt lgkmcnt(0)
        s_barrier
        v_lshrrev_b32 v56, 4, v0
        v_and_b32 v57, 15, v0
        v_mul_u32_u24 v58, 272, v56
        v_lshl_add_u32 v58, v57, 4, v58
        ds_read_b128 v[32:35], v58
        ds_read_b128 v[36:39], v58 offset:{16*272}
        v_lshlrev_b32 v56, 12, v56
        v_lshl_add_u32 v56, v57, 4, v56
        s_lshl_b32 s{sT0}, s{sfs}, 17
        s_lshl_b32 s{sT1}, s{srb}, 8
        s_add_u32 s{sT0}, s{sT0}, s{sT1}
        s_add_u32 s{sT1}, s{sT0}, 65536
        v_mul_f32 v59, {LOG2E}, v{vR}
        v_mul_f32 v3, -2.0, v{vR}
        v_lshlrev_b32 v1, 4, v2
        s_waitcnt lgkmcnt(1)
        buffer_store_dwordx4 v[32:35], v56, s[{sXNT}:{sXNT+3}], s{sT0} offen {coh}
        s_waitcnt lgkmcnt(0)
        buffer_store_dwordx4 v[36:39], v56, s[{sXNT}:{sXNT+3}], s{sT1} offen {coh}
        """)
    else:
        a(f"""
        v_mul_f32 v59, {LOG2E}, v{vR}
        v_mul_f32 v3, -2.0, v{vR}
        v_lshlrev_b32 v1, 4, v2
        s_nop 7
        s_nop 3
        """)
    mark(a, 5)
    a(f"""
    s_lshl_b32 s{sT0}, s{srb}, 2
    s_add_u32 s{sT0}, s{sT0}, s{sw}
    s_mul_i32 s{sT0}, s{sT0}, 112
    s_lshl_b32 s{sT1}, s{sfs}, 3
    s_add_u32 s{sT0}, s{sT0}, s{sT1}
    s_lshl_b32 s33, s{sT0}, 10
    """)
    Y = 16; T = 24
    for j in range(4):
        if j == mid_j and mid_sig: mid_sig(a, 2 * mid_j)
        a(f"""
        s_add_u32 s{sT1}, s{sw}, {j}
        s_and_b32 s{sT1}, s{sT1}, 3
        s_lshl_b32 s{sT1}, s{sT1}, 11
        s_add_u32 s34, s33, s{sT1}
        """)
        for half in range(2):
            base = ACC + 16 * j + 8 * half
            F = 40 + 4 * half
            for e in range(8): a(f"v_mul_f32 v{Y+e}, v{base+e}, v59")
            for e in range(8): a(f"v_exp_f32 v{Y+e}, v{Y+e}")
            for e in range(8): a(f"v_add_f32 v{T+e}, 2.0, v{Y+e}")
            for e in range(8): a(f"v_fma_f32 v{T+e}, v{Y+e}, v{T+e}, 2.0")
            for e in range(8): a(f"v_rcp_f32 v{T+e}, v{T+e}")
            for e in range(8): a(f"v_fma_f32 v{T+e}, v{T+e}, v3, v{vR}")
            for e in range(8): a(f"v_mul_f32 v{T+e}, v{base+e}, v{T+e}")
            for e in range(4): a(f"v_cvt_pk_bf16_f32 v{F+e}, v{T+2*e}, v{T+2*e+1}")
            if 's' not in XV: a(f"buffer_store_dwordx4 v[{F}:{F+3}], v1, s[{sACT}:{sACT+3}], s34 offen offset:{half*1024} {coh}")
            if j == 3 and half == 1: mark(a, 6)
    if done: done(a)
```

```python
from asmlib import *
import os
XW = os.environ.get('XW', '')

def emit_g2_setup(a, wg="s2"):
    sw, srb, stb, sdb, sT0, sT1 = 24, 25, 26, 27, 31, 32
    a(f"""
    s_load_dwordx2 s[36:37], s[0:1], {KA['u']}
    s_load_dwordx2 s[38:39], s[0:1], {KA['w2']}
    s_load_dwordx2 s[40:41], s[0:1], {KA['out']}
    s_load_dwordx2 s[42:43], s[0:1], {KA['ws']}
    v_lshrrev_b32 v1, 6, v0
    v_and_b32 v2, 63, v0
    s_and_b32 s{sT0}, {wg}, 7
    s_lshr_b32 s{sT1}, {wg}, 3
    v_readfirstlane_b32 s{sw}, v1
    s_lshl_b32 s{stb}, s{sT0}, 2
    s_and_b32 s{sT0}, s{sT1}, 3
    s_add_u32 s{stb}, s{stb}, s{sT0}
    s_lshr_b32 s{sdb}, s{sT1}, 2
    s_waitcnt lgkmcnt(0)
    """)
    a.srd(4, 36, SZ['u']); a.srd(8, 38, SZ['w2']); a.srd(12, 42, 7340032, WS_ACT); a.srd(16, 42, 1835008, WS_ST); a.srd(20, 40, SZ['out'])

def emit_g2(a, coh="", wait_act=None, wait_st=None, mark=lambda a, i: None, early=None):
    sw, stb, sdb, sT0, sT1 = 24, 26, 27, 31, 32
    ACC = 64
    ACT = 128
    AF = [16, 24]
    vWo, vAo, vA0, vA1 = 4, 5, 6, 7
    NS = 8; P = 7
    sAo0, sAo1, sWo, sM = 28, 29, 30, 33
    a(f"""
    v_lshrrev_b32 v8, 3, v2
    v_mul_u32_u24 v{vWo}, 896, v8
    v_lshrrev_b32 v9, 2, v2
    v_and_b32 v9, 1, v9
    v_lshrrev_b32 v10, 4, v2
    v_and_b32 v10, 1, v10
    v_xor_b32 v9, v9, v10
    v_lshl_add_u32 v{vWo}, v9, 6, v{vWo}
    v_and_b32 v9, 3, v2
    v_lshl_add_u32 v{vWo}, v9, 4, v{vWo}
    v_lshlrev_b32 v{vAo}, 4, v2
    s_lshl_b32 s{sT0}, s{stb}, 1
    s_mul_i32 s{sT0}, s{sT0}, 112
    s_mul_i32 s{sT1}, s{sw}, 28
    s_add_u32 s{sT0}, s{sT0}, s{sT1}
    s_lshl_b32 s{sAo0}, s{sT0}, 10
    s_add_u32 s{sAo1}, s{sAo0}, {112*1024}
    s_mul_i32 s{sWo}, s{sT1}, {16*896}
    s_lshl_b32 s{sT0}, s{sdb}, 7
    s_add_u32 s{sWo}, s{sWo}, s{sT0}
    s_lshl_b32 s{sM}, s{sw}, 14
    """)
    a(f"""
    v_and_b32 v8, 15, v2
    v_lshrrev_b32 v9, 2, v8
    v_and_b32 v10, 3, v8
    v_lshrrev_b32 v11, 5, v2
    v_lshl_add_u32 v11, v11, 2, v9
    v_lshlrev_b32 v11, 7, v11
    v_lshl_add_u32 v11, v10, 3, v11
    v_lshrrev_b32 v12, 4, v2
    v_and_b32 v12, 1, v12
    v_lshl_add_u32 v11, v12, 5, v11
    v_lshrrev_b32 v9, 1, v9
    v_lshl_add_u32 v{vA0}, v9, 6, v11
    v_xor_b32 v9, 1, v9
    v_lshl_add_u32 v{vA1}, v9, 6, v11
    v_add_u32 v{vA0}, s{sM}, v{vA0}
    v_add_u32 v{vA1}, s{sM}, v{vA1}
    """)
    def wload(k):
        slot = k % NS
        a(f"""
        s_add_u32 m0, s{sM}, {slot*2048}
        s_add_u32 s{sT0}, s{sWo}, {k*16*896}
        buffer_load_dwordx4 v{vWo}, s[8:11], s{sT0} offen lds
        s_add_u32 m0, s{sM}, {slot*2048+1024}
        s_add_u32 s{sT0}, s{sT0}, {8*896}
        buffer_load_dwordx4 v{vWo}, s[8:11], s{sT0} offen lds
        """)
    def aload(k):
        slot = k % NS
        R = ACT + 8 * slot
        a(f"""
        s_add_u32 s{sT0}, s{sAo0}, {k*1024}
        s_add_u32 s{sT1}, s{sAo1}, {k*1024}
        buffer_load_dwordx4 v[{R}:{R+3}], v{vAo}, s[12:15], s{sT0} offen {coh}
        buffer_load_dwordx4 v[{R+4}:{R+7}], v{vAo}, s[12:15], s{sT1} offen {coh}
        """)
    KP = 13
    if early:
        sF, sN, FCVo, SPINN = early
        a(f"""
        v_lshrrev_b32 v9, 2, v0
        v_and_b32 v10, 3, v0
        v_lshlrev_b32 v11, 12, v9
        v_lshl_add_u32 v11, v10, 5, v11
        v_lshrrev_b32 v12, 3, v0
        v_and_b32 v13, 7, v0
        v_mul_u32_u24 v14, 896, v12
        v_lshl_add_u32 v14, v13, 4, v14
        v_min_u32 v193, 7, v2
        v_lshlrev_b32 v193, 6, v193
        s_lshl_b32 s{sT0}, s{sdb}, 18
        s_lshl_b32 s{sT1}, s{stb}, 7
        s_add_u32 s48, s{sT0}, s{sT1}
        s_mul_i32 s{sT0}, s{stb}, {64*896}
        s_lshl_b32 s{sT1}, s{sdb}, 7
        s_add_u32 s50, s{sT0}, s{sT1}
        s_add_u32 s51, s50, {32*896}
        s_lshl_b32 s{sT0}, s{sdb}, 11
        s_lshl_b32 s{sT1}, s{sw}, 9
        s_add_u32 s49, s{sT0}, s{sT1}
        s_add_u32 s49, s49, {FCVo}
        """)
    for k in range(P): wload(k)
    for i in range(64): a(f"v_mov_b32 v{ACC+i}, 0")
    if wait_act: wait_act(a)
    for k in range(P): aload(k)
    APF = 0
    if os.environ.get('APF', '1') == '1':
        a(f"""
        s_lshl_b32 s{sT0}, s{stb}, 1
        s_mul_i32 s{sT0}, s{sT0}, {112*1024}
        s_lshl_b32 s{sT1}, s{sdb}, 15
        s_add_u32 s{sT0}, s{sT0}, s{sT1}
        v_lshlrev_b32 v9, 7, v0
        buffer_load_dword v194, v9, s[12:15], s{sT0} offen {coh}
        """)
        APF = 1
    def reads(k):
        slot = k % NS; F = AF[k % 2]
        for dt, va in ((0, vA0), (1, vA1)):
            for q in range(2):
                a(f"ds_read_b64_tr_b16 v[{F+4*dt+2*q}:{F+4*dt+2*q+1}], v{va} offset:{slot*2048+q*1024}")
    def outstanding_after(k):
        if k < P: return 2 * (P - 1 - k) + 4 * min(k, 28 - P)
        return 4 * (min(k + P, 28) - 1 - k)
    a(f"s_waitcnt vmcnt({outstanding_after(0) + APF})")
    mark(a, 3)
    reads(0)
    def read_list(k):
        slot = k % NS; F = AF[k % 2]
        return [f"ds_read_b64_tr_b16 v[{F+4*dt+2*q}:{F+4*dt+2*q+1}], v{va} offset:{slot*2048+q*1024}" for dt, va in ((0, vA0), (1, vA1)) for q in range(2)]
    a(f"s_add_u32 s52, s{sWo}, {P*16*896}\ns_add_u32 s53, s{sAo0}, {P*1024}\ns_add_u32 s54, s{sAo1}, {P*1024}\nv_add_u32 v15, {8*896}, v{vWo}")
    for k in range(28):
        R1 = []
        if k + 1 < 28:
            if k + 1 < P:
                n = 2 * (P - 1 - (k + 1)) + 4 * min(k, 28 - P) + APF
            else:
                n = 4 * (min(k - 1 + P, 27) - (k + 1))
            if early:
                if k > KP and k + 1 <= KP + P: n += 1
                if k > 27 - P: n += 4
            a(f"s_waitcnt vmcnt({n}) lgkmcnt(2)")
            R1 = read_list(k + 1)
        else:
            a("s_waitcnt lgkmcnt(2)")
        pf = k + P < 28
        pfw = pf and 'w' not in XW; pfa = pf and 'a' not in XW
        if 'r' in XW: R1 = ["s_nop 0"] * len(R1)
        slot = (k + P) % NS
        RA = ACT + 8 * slot
        F = AF[k % 2]; R = ACT + 8 * (k % NS)
        def mf(dt, tt):
            D = ACC + 16 * (2 * dt + tt)
            a(f"v_mfma_f32_32x32x16_bf16 v[{D}:{D+15}], v[{F+4*dt}:{F+4*dt+3}], v[{R+4*tt}:{R+4*tt+3}], v[{D}:{D+15}]")
        mf(0, 0)
        if pfw: a(f"s_add_u32 m0, s{sM}, {slot*2048}")
        for r in R1[0:2]: a(r)
        if pfw: a(f"buffer_load_dwordx4 v{vWo}, s[8:11], s52 offen lds")
        mf(0, 1)
        if pfw: a(f"s_add_u32 m0, s{sM}, {slot*2048+1024}")
        for r in R1[2:4]: a(r)
        if pfw: a(f"buffer_load_dwordx4 v15, s[8:11], s52 offen lds\ns_add_u32 s52, s52, {16*896}")
        a(f"s_waitcnt lgkmcnt({len(R1)})")
        mf(1, 0)
        if pfa: a(f"buffer_load_dwordx4 v[{RA}:{RA+3}], v{vAo}, s[12:15], s53 offen {coh}\ns_add_u32 s53, s53, 1024")
        mf(1, 1)
        if pfa: a(f"buffer_load_dwordx4 v[{RA+4}:{RA+7}], v{vAo}, s[12:15], s54 offen {coh}\ns_add_u32 s54, s54, 1024")
        if early and k == KP:
            a(f"buffer_load_dword v192, v193, s[{sF}:{sF+3}], s49 offen sc1")
        if early and k == 27 - P:
            lab = a.label("es")
            mark(a, 5)
            a(f"""
            v_cmp_ne_u32 vcc, s{sN}, v192
            s_cbranch_vccz {lab}_d
            s_mov_b32 s61, {SPINN}
            {lab}:
            buffer_load_dword v192, v193, s[{sF}:{sF+3}], s49 offen sc1
            s_sub_u32 s61, s61, 1
            s_cbranch_scc1 {lab}_d
            s_waitcnt vmcnt(0)
            v_cmp_ne_u32 vcc, s{sN}, v192
            s_cbranch_vccnz {lab}
            {lab}_d:
            """)
            mark(a, 6)
            a(f"""
            buffer_load_dwordx4 v[196:199], v11, s[16:19], s48 offen {coh}
            buffer_load_dwordx4 v[200:203], v11, s[16:19], s48 offen offset:16 {coh}
            buffer_load_dwordx4 v[204:207], v14, s[4:7], s50 offen
            buffer_load_dwordx4 v[208:211], v14, s[4:7], s51 offen
            """)
    mark(a, 4)
    a("s_nop 15\ns_barrier")
    a(f"""
    v_and_b32 v8, 31, v2
    v_lshrrev_b32 v9, 5, v2
    v_mul_u32_u24 v8, 272, v8
    v_lshl_add_u32 v8, v9, 4, v8
    s_mul_i32 s{sT0}, s{sw}, 17408
    v_add_u32 v8, s{sT0}, v8
    """)
    for dt in range(2):
        for tt in range(2):
            D = ACC + 16 * (2 * dt + tt)
            for j in range(4):
                a(f"ds_write_b128 v8, v[{D+4*j}:{D+4*j+3}] offset:{tt*32*272 + dt*128 + j*32}")
    if wait_st: wait_st(a)
    LST = 69632
    if not early:
        a(f"""
        v_lshrrev_b32 v9, 2, v0
        v_and_b32 v10, 3, v0
        v_lshlrev_b32 v11, 12, v9
        v_lshl_add_u32 v11, v10, 5, v11
        s_lshl_b32 s{sT0}, s{sdb}, 18
        s_lshl_b32 s{sT1}, s{stb}, 7
        s_add_u32 s{sT0}, s{sT0}, s{sT1}
        buffer_load_dwordx4 v[16:19], v11, s[16:19], s{sT0} offen {coh}
        buffer_load_dwordx4 v[20:23], v11, s[16:19], s{sT0} offen offset:16 {coh}
        v_lshrrev_b32 v12, 3, v0
        v_and_b32 v13, 7, v0
        v_mul_u32_u24 v14, 896, v12
        v_lshl_add_u32 v14, v13, 4, v14
        s_mul_i32 s{sT0}, s{stb}, {64*896}
        s_lshl_b32 s{sT1}, s{sdb}, 7
        s_add_u32 s34, s{sT0}, s{sT1}
        s_add_u32 s35, s34, {32*896}
        buffer_load_dwordx4 v[24:27], v14, s[4:7], s34 offen
        buffer_load_dwordx4 v[28:31], v14, s[4:7], s35 offen
        v_mul_u32_u24 v9, 144, v9
        v_lshl_add_u32 v9, v10, 5, v9
        v_add_u32 v9, {LST}, v9
        s_waitcnt vmcnt(2)
        ds_write_b128 v9, v[16:19]
        ds_write_b128 v9, v[20:23] offset:16
        s_waitcnt lgkmcnt(0)
        s_barrier
        """)
    else:
        a(f"""
        s_mov_b32 s34, s50
        s_mov_b32 s35, s51
        v_lshrrev_b32 v9, 2, v0
        v_and_b32 v10, 3, v0
        v_mul_u32_u24 v9, 144, v9
        v_lshl_add_u32 v9, v10, 5, v9
        v_add_u32 v9, {LST}, v9
        s_waitcnt vmcnt(2)
        ds_write_b128 v9, v[196:199]
        ds_write_b128 v9, v[200:203] offset:16
        s_waitcnt lgkmcnt(0)
        s_barrier
        """)
    a(f"""
    v_mul_u32_u24 v9, 272, v12
    v_lshl_add_u32 v9, v13, 5, v9
    v_mul_u32_u24 v10, {8*144}, v13
    v_lshl_add_u32 v10, v12, 1, v10
    v_add_u32 v10, {LST}, v10
    """)
    for p in range(2):
        G = 64
        for w in range(4):
            a(f"ds_read_b128 v[{G+8*w}:{G+8*w+3}], v9 offset:{w*17408 + p*32*272}")
            a(f"ds_read_b128 v[{G+8*w+4}:{G+8*w+7}], v9 offset:{w*17408 + p*32*272 + 16}")
        for e in range(8):
            a(f"ds_read_u16 v{96+e}, v10 offset:{e*144 + p*64}")
        a("s_waitcnt lgkmcnt(0)")
        for e in range(8):
            a(f"v_add_f32 v{G+e}, v{G+e}, v{G+8+e}\nv_add_f32 v{G+16+e}, v{G+16+e}, v{G+24+e}")
        for e in range(8):
            a(f"v_add_f32 v{G+e}, v{G+e}, v{G+16+e}")
        for e in range(0, 8, 2):
            a(f"v_cvt_pk_bf16_f32 v{72+e}, v{G+e}, v{G+e+1}")
            a(f"v_lshlrev_b32 v{G+e}, 16, v{72+e}\nv_and_b32 v{G+e+1}, 0xffff0000, v{72+e}")
        for e in range(8): a(f"v_mul_f32 v{72+e}, {f2u(-1.4426950408889634)}, v{G+e}")
        for e in range(8): a(f"v_exp_f32 v{72+e}, v{72+e}")
        for e in range(8): a(f"v_add_f32 v{72+e}, 1.0, v{72+e}")
        for e in range(8): a(f"v_rcp_f32 v{72+e}, v{72+e}")
        for e in range(8): a(f"v_mul_f32 v{G+e}, v{G+e}, v{72+e}")
        for e in range(0, 8, 2):
            a(f"v_cvt_pk_bf16_f32 v{72+e}, v{G+e}, v{G+e+1}")
            a(f"v_lshlrev_b32 v{G+e}, 16, v{72+e}\nv_and_b32 v{G+e+1}, 0xffff0000, v{72+e}")
        for e in range(8): a(f"v_lshlrev_b32 v{96+e}, 16, v{96+e}\nv_mul_f32 v{G+e}, v{G+e}, v{96+e}")
        if p == 0: a("s_waitcnt vmcnt(0)" if early else "s_waitcnt vmcnt(1)")
        elif not early: a("s_waitcnt vmcnt(1)")
        X = (204 if early else 24) + 4 * p
        for e in range(0, 8, 2):
            a(f"v_cvt_pk_bf16_f32 v{72+e}, v{G+e}, v{G+e+1}")
            a(f"v_lshlrev_b32 v{G+e}, 16, v{72+e}\nv_and_b32 v{G+e+1}, 0xffff0000, v{72+e}")
            a(f"v_lshlrev_b32 v{80+e}, 16, v{X+e//2}\nv_and_b32 v{81+e}, 0xffff0000, v{X+e//2}")
            a(f"v_add_f32 v{G+e}, v{G+e}, v{80+e}\nv_add_f32 v{G+e+1}, v{G+e+1}, v{81+e}")
            a(f"v_cvt_pk_bf16_f32 v{104+4*p+e//2}, v{G+e}, v{G+e+1}")
        a(f"buffer_store_dwordx4 v[{104+4*p}:{107+4*p}], v14, s[20:23], s{34+p} offen")
```

```python
from asmlib import *
GEN_STRIDE = 264
GEN_W = 53 * GEN_STRIDE
L_GEN = 0
L_T = 4096
L_CP = 4 * GEN_W
CPS = 4160
L_XS = L_CP + 4 * CPS
L_END = L_XS + 2 * 4608
ZADDR = 8192 + 128
LN2 = 0.6931471805599453
LOG2E_LO = 1.925963033500011e-08

def cmul(a, dr, di, xr, xi, wr, wi, nwi):
    a(f"v_mul_f32 v{dr}, v{xr}, v{wr}")
    a(f"v_mul_f32 v{di}, v{xr}, v{wi}")
    a(f"v_fmac_f32 v{dr}, v{xi}, v{nwi}")
    a(f"v_fmac_f32 v{di}, v{xi}, v{wr}")

class _S:
    def __init__(self): self.L = []
    def __call__(self, t):
        for l in t.strip("\n").split("\n"):
            l = l.strip()
            if l: self.L.append(l)
def merge(a, streams, pattern=None):
    idx = [0] * len(streams)
    pattern = pattern or list(range(len(streams)))
    while any(idx[i] < len(streams[i].L) for i in range(len(streams))):
        for p in pattern:
            if idx[p] < len(streams[p].L):
                a(streams[p].L[idx[p]]); idx[p] += 1

def exp_bf16r(a, dst, src, t0, t1):
    a(f"""
    v_mul_f32 v{t0}, {LOG2E}, v{src}
    v_fma_f32 v{t1}, v{src}, s60, -v{t0}
    v_fmac_f32 v{t1}, {f2u(LOG2E_LO)}, v{src}
    v_exp_f32 v{t0}, v{t0}
    v_mul_f32 v{t1}, {f2u(LN2)}, v{t1}
    v_fmac_f32 v{t0}, v{t0}, v{t1}
    v_cvt_pk_bf16_f32 v{t0}, v{t0}, v{t0}
    v_and_b32 v{dst}, 0xffff0000, v{t0}
    """)

def emit_kg_setup(a, wg="s2"):
    a(f"""
    s_load_dwordx4 s[36:39], s[0:1], {KA['logA']}
    s_load_dwordx4 s[40:43], s[0:1], {KA['Cre']}
    s_load_dwordx4 s[44:47], s[0:1], {KA['logdt']}
    s_load_dwordx2 s[48:49], s[0:1], {KA['ws']}
    v_lshrrev_b32 v1, 6, v0
    v_and_b32 v2, 63, v0
    s_mov_b32 s25, {wg}
    s_mov_b32 s60, {LOG2E}
    v_readfirstlane_b32 s24, v1
    v_lshlrev_b32 v3, 1, v0
    s_waitcnt lgkmcnt(0)
    """)
    a.srd(4, 36, SZ['logA']); a.srd(8, 38, SZ['Aim']); a.srd(12, 40, SZ['Cre']); a.srd(16, 42, SZ['Cim'])
    a.srd(20, 44, SZ['logdt']); a.srd(28, 46, SZ['D'])
    a(f"s_lshl_b32 s26, s25, 10\ns_lshl_b32 s27, s25, 2\nv_mov_b32 v4, 0")
    for c in range(2):
        b = 8 + 8 * c
        a(f"""
        s_add_u32 s50, s26, {512*c}
        s_add_u32 s51, s27, {2*c}
        buffer_load_ushort v{b}, v3, s[4:7], s50 offen
        buffer_load_ushort v{b+1}, v3, s[8:11], s50 offen
        buffer_load_ushort v{b+2}, v3, s[12:15], s50 offen
        buffer_load_ushort v{b+3}, v3, s[16:19], s50 offen
        buffer_load_ushort v{b+4}, v4, s[20:23], s51 offen
        buffer_load_ushort v{b+5}, v4, s[28:31], s51 offen
        """)
    a(f"v_lshlrev_b32 v5, 3, v0\nv_sub_u32 v5, 2049, v5\nv_mov_b32 v6, {L_T}")
    st = []
    for k in range(9):
        q = _S(); d = 24 + k; t = 42 + 2 * k; u = t + 1
        q(f"v_subrev_u32 v{t}, {k}, v5")
        if k < 2: q(f"v_min_i32 v{t}, 2047, v{t}")
        q(f"""
        v_cvt_f32_u32 v{t}, v{t}
        v_cvt_pk_bf16_f32 v{t}, v{t}, v{t}
        v_lshlrev_b32 v{t}, 16, v{t}
        v_cvt_u32_f32 v{t}, v{t}
        v_lshrrev_b32 v{d}, 8, v{t}
        v_and_b32 v{u}, 7, v{t}
        v_lshl_add_u32 v{d}, v{d}, 10, v6
        v_bfe_u32 v{t}, v{t}, 3, 5
        v_lshl_add_u32 v{d}, v{u}, 7, v{d}
        v_lshl_add_u32 v{d}, v{t}, 2, v{d}
        """)
        st.append(q)
    merge(a, st)
    a(f"""
    v_mov_b32 v35, {L_T + ZADDR}
    v_cmp_eq_u32 vcc, 0, v0
    v_mov_b32 v5, {L_T + 128}
    v_mov_b32 v7, {L_T}
    v_cndmask_b32 v33, v35, v5, vcc
    v_cndmask_b32 v34, v35, v7, vcc
    """)
    for d in range(36, 42): a(f"v_mov_b32 v{d}, {L_T + ZADDR}")

def emit_kg_channel(a, c, wait=True, mark=lambda a, i: None, hook1=None, hook2=None):
    b = 8 + 8 * c
    A2, TH, DT2 = 42, 43, 44
    W1, W8, W256 = 46, 50, 54
    t0, t1, t2 = 58, 59, 60
    U = 64
    P0, P1 = 72, 74
    PK = 76
    vW = 45
    if c == 0:
        a("s_waitcnt vmcnt(6)")
    elif wait:
        a("s_waitcnt vmcnt(0)")
    if c == 0: mark(a, 7)
    for k in range(6): a(f"v_lshlrev_b32 v{b+k}, 16, v{b+k}")
    q0, q1 = _S(), _S()
    exp_bf16r(q0, DT2, b + 4, t0, t1)
    exp_bf16r(q1, A2, b, 88, 89)
    merge(a, [q0, q1])
    a(f"""
    v_mul_f32 v{A2}, v{A2}, v{DT2}
    v_mul_f32 v{TH}, v{b+1}, v{DT2}
    s_mul_i32 s50, s24, {GEN_W}
    v_lshlrev_b32 v{vW}, 2, v2
    v_mul_f32 v{A2}, {f2u(-1.4426950408889634)}, v{A2}
    v_mul_f32 v{TH}, 0.15915494, v{TH}
    v_add_f32 v{DT2}, v{DT2}, v{DT2}
    v_add_u32 v{vW}, s50, v{vW}
    v_mov_b32 v{U}, v{b+2}
    v_sub_f32 v{U+1}, 0, v{b+3}
    """)
    W16 = 96
    st = []
    for n, (W, p) in enumerate(((W1, 1.0), (W8, 8.0), (W16, 16.0), (W256, 256.0))):
        q = _S(); x0, x1, x2 = 104 + 3 * n, 105 + 3 * n, 106 + 3 * n
        q(f"""
        v_mul_f32 v{x0}, {f2u(p)}, v{A2}
        v_mul_f32 v{x1}, {f2u(p)}, v{TH}
        v_exp_f32 v{x0}, v{x0}
        v_fract_f32 v{x1}, v{x1}
        v_cos_f32 v{x2}, v{x1}
        v_sin_f32 v{x1}, v{x1}
        v_mul_f32 v{W}, v{x0}, v{x2}
        v_mul_f32 v{W+1}, v{x0}, v{x1}
        v_sub_f32 v{W+2}, 0, v{W+1}
        """)
        st.append(q)
    merge(a, st)
    def put(q, row, r, i, pk):
        q(f"v_cvt_pk_bf16_f32 v{pk}, v{r}, v{i}")
        q(f"ds_write_b32 v{vW}, v{pk} offset:{row*GEN_STRIDE}")
    def xm(q, dr, di, xr, xi, W):
        cmul(q, dr, di, xr, xi, W, W + 2, W + 1)
    def ym(q, dr, di, xr, xi, W):
        cmul(q, dr, di, xr, xi, W, W + 1, W + 2)
    X = _S(); pkx = [76, 77, 78, 79]
    def px(row, r, i): put(X, row, r, i, pkx[row % 4])
    px(0, U, U + 1)
    cur = (U, U + 1)
    for j in range(1, 8):
        dst = (U + j, U + j + 1) if j % 2 == 0 else (P0, P0 + 1)
        xm(X, dst[0], dst[1], cur[0], cur[1], W1)
        px(j, dst[0], dst[1]); cur = dst
    R8, R10, RA, RB = 80, 82, 84, 86
    xm(X, R8, R8 + 1, U, U + 1, W256); px(8, R8, R8 + 1)
    xm(X, RA, RA + 1, U + 2, U + 3, W256); px(9, RA, RA + 1)
    xm(X, R10, R10 + 1, U + 4, U + 5, W256); px(10, R10, R10 + 1)
    xm(X, RA, RA + 1, U + 6, U + 7, W256); px(11, RA, RA + 1)
    xm(X, RA, RA + 1, R8, R8 + 1, W256); px(12, RA, RA + 1)
    xm(X, RB, RB + 1, R10, R10 + 1, W256); px(13, RB, RB + 1)
    xm(X, R8, R8 + 1, RA, RA + 1, W256); px(14, R8, R8 + 1)
    xm(X, R10, R10 + 1, RB, RB + 1, W256); px(15, R10, R10 + 1)
    cur = R8
    for row in range(16, 21):
        dst = RA if cur == R8 else R8
        xm(X, dst, dst + 1, cur, cur + 1, W256); px(row, dst, dst + 1); cur = dst
    Ye, Yo = _S(), _S()
    Ye(f"v_mov_b32 v88, 1.0\nv_mov_b32 v89, 0")
    put(Ye, 21, 88, 89, 100)
    put(Ye, 23, W16, W16 + 1, 101)
    cur = W16
    for ci in range(4, 32, 2):
        dst = 88 if cur != 88 else 90
        ym(Ye, dst, dst + 1, cur, cur + 1, W16); put(Ye, 21 + ci, dst, dst + 1, 100 + (ci // 2) % 2); cur = dst
    put(Yo, 22, W8, W8 + 1, 102)
    cur = W8
    for ci in range(3, 32, 2):
        dst = 92 if cur != 92 else 94
        ym(Yo, dst, dst + 1, cur, cur + 1, W16); put(Yo, 21 + ci, dst, dst + 1, 102 + (ci // 2) % 2); cur = dst
    merge(a, [X, Ye, Yo], pattern=[0, 1, 0, 2])
    mark(a, 1)
    if hook1: hook1(a)
    ACC = 88
    FA, FB = 104, 112
    a(f"""
    v_and_b32 v{t0}, 31, v2
    v_lshrrev_b32 v{t1}, 5, v2
    v_lshlrev_b32 v{t1}, 4, v{t1}
    v_add_u32 v{t1}, s50, v{t1}
    v_min_u32 v{t2}, 20, v{t0}
    v_mul_u32_u24 v{t2}, {GEN_STRIDE}, v{t2}
    v_add_u32 v{t2}, v{t2}, v{t1}
    v_mul_u32_u24 v{t0}, {GEN_STRIDE}, v{t0}
    v_add_u32 v{t0}, v{t0}, v{t1}
    """)
    for i in range(16): a(f"v_mov_b32 v{ACC+i}, 0")
    a("s_waitcnt lgkmcnt(0)")
    a(f"v_add_u32 v{t0}, {21*GEN_STRIDE}, v{t0}")
    def rd(s):
        fa = FA + 8 * (s % 3); fb = fa + 4
        a(f"ds_read2_b64 v[{fa}:{fa+3}], v{t2} offset0:{4*s} offset1:{4*s+1}")
        a(f"ds_read2_b64 v[{fb}:{fb+3}], v{t0} offset0:{4*s} offset1:{4*s+1}")
    rd(0); rd(1)
    for s in range(8):
        if s + 2 < 8: rd(s + 2)
        a(f"s_waitcnt lgkmcnt({2 * min(2, 7 - s)})")
        fa = FA + 8 * (s % 3); fb = fa + 4
        a(f"v_mfma_f32_32x32x16_bf16 v[{ACC}:{ACC+15}], v[{fa}:{fa+3}], v[{fb}:{fb+3}], v[{ACC}:{ACC+15}]")
    a(f"""
    v_and_b32 v{t0}, 31, v2
    v_lshlrev_b32 v{t0}, 2, v{t0}
    v_lshrrev_b32 v{t1}, 5, v2
    v_lshl_add_u32 v{t0}, v{t1}, 9, v{t0}
    v_add_u32 v{t0}, s50, v{t0}
    s_nop 15
    """)
    for r in range(12):
        a(f"ds_write_b32 v{t0}, v{ACC+r} offset:{(8*(r//4) + r%4)*128}")
    a("s_waitcnt lgkmcnt(0)\ns_barrier")
    mark(a, 2)
    if hook2: hook2(a)
    a(f"""
    v_lshlrev_b32 v{t0}, 2, v0
    """)
    for g in range(3):
        for w in range(4):
            a(f"ds_read_b32 v{ACC+4*g+w}, v{t0} offset:{w*GEN_W + g*1024}")
    a(f"""
    v_lshrrev_b32 v{t1}, 5, v0
    v_and_b32 v{t2}, 31, v0
    v_lshlrev_b32 v{t2}, 2, v{t2}
    v_lshlrev_b32 v61, 8, v{t1}
    v_add_u32 v61, 1024, v61
    v_lshlrev_b32 v62, 9, v{t1}
    v_cmp_gt_u32 vcc, 4, v{t1}
    s_nop 1
    v_cndmask_b32 v61, v62, v61, vcc
    v_add_u32 v61, v61, v{t2}
    v_lshlrev_b32 v62, 10, v{t1}
    v_add_u32 v62, v62, v{t2}
    s_waitcnt lgkmcnt(0)
    """)
    for g in range(3):
        a(f"""
        v_add_f32 v{ACC+4*g}, v{ACC+4*g}, v{ACC+4*g+1}
        v_add_f32 v{ACC+4*g+2}, v{ACC+4*g+2}, v{ACC+4*g+3}
        v_add_f32 v{ACC+4*g}, v{ACC+4*g}, v{ACC+4*g+2}
        v_mul_f32 v{ACC+4*g}, v{ACC+4*g}, v{DT2}
        """)
    a(f"""
    ds_write_b32 v{t0}, v{ACC} offset:{L_T}
    ds_write_b32 v61, v{ACC+4} offset:{L_T}
    v_cmp_gt_u32 vcc, 5, v{t1}
    s_and_saveexec_b64 s[52:53], vcc
    ds_write_b32 v62, v{ACC+8} offset:{L_T+4096}
    s_mov_b64 exec, s[52:53]
    v_mov_b32 v61, 0
    v_mov_b32 v62, {L_T+ZADDR}
    ds_write_b32 v62, v61
    s_waitcnt lgkmcnt(0)
    s_barrier
    """)
    for st in range(2):
        G = 88
        if st == 1:
            a("v_cmp_gt_u32 vcc, 4, v0\ns_and_saveexec_b64 s[52:53], vcc")
            lab = a.label("exp")
            a(f"s_cbranch_execz {lab}")
        for k in range(9): a(f"ds_read_b32 v{G+k}, v{24+9*st+k}")
        a(f"v_lshlrev_b32 v{t0}, 4, v0\nv_add_u32 v{t0}, {L_CP}, v{t0}\ns_waitcnt lgkmcnt(0)")
        for k in range(4):
            a(f"v_cvt_pk_bf16_f32 v{104+k}, v{G+2*k+1}, v{G+2*k+2}")
            a(f"v_cvt_pk_bf16_f32 v{108+k}, v{G+2*k}, v{G+2*k+1}")
        a(f"ds_write_b128 v{t0}, v[104:107] offset:{c*2*CPS + 4096*st}")
        a(f"ds_write_b128 v{t0}, v[108:111] offset:{c*2*CPS + CPS + 4096*st}")
        if st == 1:
            a(f"{lab}:\ns_mov_b64 exec, s[52:53]")
    a("s_waitcnt lgkmcnt(0)\ns_barrier")

def emit_cv(a, coh="", rr_hook=None):
    ACC = 8+16
    S = [64, 128]
    vAa, vBa, vT = 4, 5, 6
    a(f"""
    s_lshr_b32 s50, s24, 1
    s_and_b32 s51, s24, 1
    v_and_b32 v56, 15, v2
    v_lshrrev_b32 v57, 4, v2
    v_and_b32 v58, 1, v56
    v_mul_u32_u24 v58, {CPS}, v58
    v_and_b32 v59, 14, v56
    v_lshlrev_b32 v59, 1, v59
    v_sub_u32 v58, v58, v59
    v_lshl_add_u32 v58, v57, 4, v58
    s_mul_i32 s52, s50, {2*CPS}
    s_lshl_b32 s53, s51, 8
    s_sub_u32 s52, s52, s53
    s_add_u32 s52, s52, {L_CP + 2*2032}
    v_add_u32 v{vAa}, s52, v58
    v_lshlrev_b32 v58, 5, v56
    v_lshl_add_u32 v58, v57, 4, v58
    s_mul_i32 s52, s50, 4608
    s_sub_u32 s52, s52, s53
    s_add_u32 s52, s52, {L_XS + 2*(256-16) - 256}
    v_add_u32 v{vBa}, s52, v58
    """)
    def loads(rr, S0):
        ops = []
        for j in range(8):
            off = 256 + 512 * j - 64 * rr
            ops.append(f"ds_read_b128 v[{S0+4*j}:{S0+4*j+3}], v{vBa} offset:{off}")
        for q in range(8):
            d = S0 + 32 + 4 * q
            ops.append(f"v_subrev_u32 v{vT}, {64*rr+512*q}, v{vAa}\nds_read2_b32 v[{d}:{d+1}], v{vT} offset0:0 offset1:1\nds_read2_b32 v[{d+2}:{d+3}], v{vT} offset0:2 offset1:3")
        return ops
    for i in range(32): a(f"v_mov_b32 v{ACC+i}, 0")
    for op in loads(0, S[0]): a(op)
    for rr in range(4):
        if rr_hook: rr_hook(a, rr)
        S0 = S[rr % 2]
        a("s_waitcnt lgkmcnt(0)")
        nxt = loads(rr + 1, S[(rr + 1) % 2]) if rr < 3 else []
        n = 0
        rem = {cb: list(range(cb + 1)) for cb in range(8)}
        last = []
        while any(rem.values()):
            cand = [cb for cb in rem if rem[cb] and cb not in last[-2:]]
            if not cand: cand = [cb for cb in rem if rem[cb]]
            cb = max(cand, key=lambda c_: (len(rem[c_]), c_))
            q = rem[cb].pop(0); last.append(cb)
            A = S0 + 32 + 4 * q; B = S0 + 4 * (cb - q)
            a(f"v_mfma_f32_16x16x32_bf16 v[{ACC+4*cb}:{ACC+4*cb+3}], v[{A}:{A+3}], v[{B}:{B+3}], v[{ACC+4*cb}:{ACC+4*cb+3}]")
            n += 1
            if n % 2 == 0 and nxt: a(nxt.pop(0))
        while nxt: a(nxt.pop(0))
    if rr_hook: rr_hook(a, 4)
    a(f"""
    s_nop 7
    v_lshlrev_b32 v56, 4, v2
    s_lshl_b32 s52, s24, 12
    v_add_u32 v57, s52, v56
    s_xor_b32 s53, s24, 1
    s_lshl_b32 s53, s53, 12
    v_add_u32 v58, s53, v56
    s_cmp_eq_u32 s51, 0
    """)
    l1 = a.label("cv"); l2 = a.label("cv")
    a(f"s_cbranch_scc0 {l1}")
    for k in range(4): a(f"ds_write_b128 v57, v[{ACC+16+4*k}:{ACC+16+4*k+3}] offset:{1024*k}")
    a(f"s_branch {l2}\n{l1}:")
    for k in range(4): a(f"ds_write_b128 v57, v[{ACC+4*k}:{ACC+4*k+3}] offset:{1024*k}")
    for k in range(16): a(f"v_mov_b32 v{ACC+k}, v{ACC+16+k}")
    a(f"{l2}:\ns_waitcnt lgkmcnt(0)\ns_barrier")
    for k in range(4): a(f"ds_read_b128 v[{64+4*k}:{64+4*k+3}], v58 offset:{1024*k}")
    a(f"""
    v_and_b32 v56, 15, v2
    v_lshrrev_b32 v57, 4, v2
    v_lshlrev_b32 v56, 5, v56
    v_lshl_add_u32 v56, v57, 3, v56
    s_lshl_b32 s52, s51, 11
    v_add_u32 v59, s52, v56
    s_mul_i32 s53, s50, 4608
    s_add_u32 s53, s53, {L_XS + 512}
    v_add_u32 v57, s53, v59
    """)
    for k in range(4): a(f"ds_read_b64 v[{80+2*k}:{80+2*k+1}], v57 offset:{512*k}")
    a(f"""
    s_cmp_eq_u32 s50, 0
    s_cselect_b64 vcc, -1, 0
    s_lshl_b32 s52, s25, 1
    s_add_u32 s52, s52, s50
    s_lshl_b32 s52, s52, 12
    v_cndmask_b32 v60, v21, v13, vcc
    s_waitcnt lgkmcnt(0)
    """)
    for k in range(4):
        for e in range(4): a(f"v_add_f32 v{ACC+4*k+e}, v{ACC+4*k+e}, v{64+4*k+e}")
        X = 80 + 2 * k
        a(f"""
        v_lshlrev_b32 v90, 16, v{X}
        v_and_b32 v91, 0xffff0000, v{X}
        v_lshlrev_b32 v92, 16, v{X+1}
        v_and_b32 v93, 0xffff0000, v{X+1}
        v_mul_f32 v90, v90, v60
        v_mul_f32 v91, v91, v60
        v_mul_f32 v92, v92, v60
        v_mul_f32 v93, v93, v60
        v_cvt_pk_bf16_f32 v94, v90, v91
        v_cvt_pk_bf16_f32 v95, v92, v93
        v_cvt_pk_bf16_f32 v96, v{ACC+4*k}, v{ACC+4*k+1}
        v_cvt_pk_bf16_f32 v97, v{ACC+4*k+2}, v{ACC+4*k+3}
        v_lshlrev_b32 v90, 16, v94
        v_and_b32 v91, 0xffff0000, v94
        v_lshlrev_b32 v92, 16, v95
        v_and_b32 v93, 0xffff0000, v95
        v_lshlrev_b32 v98, 16, v96
        v_and_b32 v99, 0xffff0000, v96
        v_lshlrev_b32 v100, 16, v97
        v_and_b32 v101, 0xffff0000, v97
        v_add_f32 v90, v90, v98
        v_add_f32 v91, v91, v99
        v_add_f32 v92, v92, v100
        v_add_f32 v93, v93, v101
        v_cvt_pk_bf16_f32 v{102+2*k}, v90, v91
        v_cvt_pk_bf16_f32 v{103+2*k}, v92, v93
        buffer_store_dwordx2 v[{102+2*k}:{103+2*k}], v59, s[32:35], s52 offen offset:{512*k} {coh}
        """)

def emit_xs_zero(a):
    a(f"""
    v_mov_b32 v5, 0
    v_lshrrev_b32 v6, 7, v0
    v_mul_u32_u24 v6, 4608, v6
    v_and_b32 v7, 127, v0
    v_lshl_add_u32 v6, v7, 2, v6
    v_add_u32 v6, {L_XS}, v6
    ds_write_b32 v6, v5
    """)
def emit_xs_load(a, coh=""):
    a(f"""
    s_lshl_b32 s52, s25, 13
    v_lshlrev_b32 v4, 5, v0
    buffer_load_dwordx4 v[88:91], v4, s[56:59], s52 offen {coh}
    buffer_load_dwordx4 v[92:95], v4, s[56:59], s52 offen offset:16 {coh}
    v_lshrrev_b32 v6, 7, v0
    v_mul_u32_u24 v6, 512, v6
    v_add_u32 v6, v6, v4
    v_add_u32 v6, {L_XS + 512}, v6
    s_waitcnt vmcnt(0)
    ds_write_b128 v6, v[88:91]
    ds_write_b128 v6, v[92:95] offset:16
    s_waitcnt lgkmcnt(0)
    s_barrier
    """)

def emit_xs_issue(a, R, coh=""):
    a(f"""
    s_lshl_b32 s52, s25, 13
    v_lshlrev_b32 v{R-1}, 5, v0
    buffer_load_dwordx4 v[{R}:{R+3}], v{R-1}, s[56:59], s52 offen {coh}
    buffer_load_dwordx4 v[{R+4}:{R+7}], v{R-1}, s[56:59], s52 offen offset:16 {coh}
    """)
def emit_xs_write(a, R):
    a(f"""
    v_lshrrev_b32 v6, 7, v0
    v_mul_u32_u24 v6, 512, v6
    v_add_u32 v6, v6, v{R-1}
    v_add_u32 v6, {L_XS + 512}, v6
    s_waitcnt vmcnt(0)
    ds_write_b128 v6, v[{R}:{R+3}]
    ds_write_b128 v6, v[{R+4}:{R+7}] offset:16
    """)
```

```python
from asmlib import *
import os
from sync import *
FSTAT = 0xC000
def emit_ln(a, SF, SN, mark=lambda a, i: None):
    X = 16
    a(f"""
    s_load_dwordx2 s[36:37], s[0:1], {KA['u']}
    s_load_dwordx2 s[42:43], s[0:1], {KA['ws']}
    s_load_dwordx2 s[62:63], s[0:1], {KA['dbg']}
    v_lshrrev_b32 v1, 3, v0
    v_and_b32 v2, 7, v0
    v_mul_u32_u24 v3, 896, v1
    v_lshl_add_u32 v3, v2, 4, v3
    s_mul_i32 s24, s2, {32*896}
    s_waitcnt lgkmcnt(0)
    """)
    a.srd(4, 36, SZ['u'])
    for i in range(7): a(f"buffer_load_dwordx4 v[{X+4*i}:{X+4*i+3}], v3, s[4:7], s24 offen offset:{128*i}")
    nonce_issue(a, 60)
    a.srd(16, 42, 1835008, WS_XNT)
    a.srd(SF, 42, 0x10000, WS_FLAG)
    a(f"""
    v_mov_b32 v4, 0
    v_mov_b32 v5, 0
    v_mov_b32 v6, 0
    v_mov_b32 v7, 0
    v_mov_b32 v8, 0x3f803f80
    v_mul_u32_u24 v9, {8*72}, v2
    v_lshl_add_u32 v9, v1, 1, v9
    s_waitcnt vmcnt(1)
    """)
    mark(a, 3)
    for r in range(28):
        a(f"v_dot2c_f32_bf16 v{4 + r % 2}, v{X+r}, v8")
        a(f"v_dot2c_f32_bf16 v{6 + r % 2}, v{X+r}, v{X+r}")
    a(f"""
    s_nop 3
    v_add_f32 v4, v4, v5
    v_add_f32 v6, v6, v7
    s_nop 1
    v_add_f32_dpp v4, v4, v4 quad_perm:[1,0,3,2] row_mask:0xf bank_mask:0xf
    v_add_f32_dpp v6, v6, v6 quad_perm:[1,0,3,2] row_mask:0xf bank_mask:0xf
    s_nop 1
    v_add_f32_dpp v4, v4, v4 quad_perm:[2,3,0,1] row_mask:0xf bank_mask:0xf
    v_add_f32_dpp v6, v6, v6 quad_perm:[2,3,0,1] row_mask:0xf bank_mask:0xf
    s_nop 1
    v_add_f32_dpp v4, v4, v4 row_half_mirror row_mask:0xf bank_mask:0xf
    v_add_f32_dpp v6, v6, v6 row_half_mirror row_mask:0xf bank_mask:0xf
    s_nop 1
    v_mul_f32 v4, {f2u(1.0/448)}, v4
    v_mul_f32 v6, {f2u(1.0/448)}, v6
    v_fma_f32 v6, -v4, v4, v6
    v_max_f32 v6, 0, v6
    v_cvt_pk_bf16_f32 v5, v4, v6
    v_and_b32 v7, 0xffff0000, v5
    v_lshlrev_b32 v4, 16, v5
    v_add_f32 v7, {f2u(1e-5)}, v7
    v_cvt_pk_bf16_f32 v7, v7, v7
    v_and_b32 v7, 0xffff0000, v7
    v_sqrt_f32 v7, v7
    s_nop 0
    v_cvt_pk_bf16_f32 v7, v7, v7
    v_and_b32 v6, 0xffff0000, v7
    v_rcp_f32 v10, v6
    v_lshrrev_b32 v11, 16, v4
    v_or_b32 v13, v11, v6
    """)
    nonce_finish(a, SN, 60)
    lab = a.label("ln")
    a(f"""
    v_mov_b32 v12, s{SN}
    v_lshlrev_b32 v14, 3, v1
    s_lshl_b32 s25, s2, 8
    s_add_u32 s25, s25, {FSTAT}
    v_cmp_eq_u32 vcc, 0, v2
    s_and_saveexec_b64 s[60:61], vcc
    s_cbranch_execz {lab}
    buffer_store_dwordx2 v[12:13], v14, s[{SF}:{SF+3}], s25 offen sc1
    {lab}:
    s_mov_b64 exec, s[60:61]
    """)
    mark(a, 4)
    if os.environ.get('TT', '0') == '1':
        a.srd(20, 42, 0xD00000, 0)
        a(f"""
        v_lshlrev_b32 v14, 15, v0
        v_add_u32 v15, 0x800000, v14
        buffer_load_dword v61, v14, s[20:23], 0 offen sc1
        buffer_load_dword v61, v15, s[20:23], 0 offen sc1
        """)
    st = []
    for g in range(4):
        q = Asm(); T = 44 + 4 * g
        for r in range(g, 28, 4):
            i, e = r // 4, 2 * (r % 4)
            q(f"""
            v_lshlrev_b32 v{T}, 16, v{X+r}
            v_and_b32 v{T+1}, 0xffff0000, v{X+r}
            v_sub_f32 v{T}, v{T}, v4
            v_sub_f32 v{T+1}, v{T+1}, v4
            v_cvt_pk_bf16_f32 v{T+2}, v{T}, v{T+1}
            v_lshlrev_b32 v{T}, 16, v{T+2}
            v_and_b32 v{T+1}, 0xffff0000, v{T+2}
            v_mul_f32 v{T}, v{T}, v10
            v_mul_f32 v{T+1}, v{T+1}, v10
            v_cvt_pk_bf16_f32 v{X+r}, v{T}, v{T+1}
            ds_write_b16 v9, v{X+r} offset:{(64*i+e)*72}
            ds_write_b16_d16_hi v9, v{X+r} offset:{(64*i+e+1)*72}
            """)
        st.append(q)
    n = max(len(q.L) for q in st)
    for i in range(n):
        for q in st:
            if i < len(q.L): a(q.L[i])
    a(f"""
    v_lshrrev_b32 v1, 2, v0
    v_and_b32 v2, 3, v0
    v_mul_u32_u24 v3, 72, v1
    v_lshl_add_u32 v3, v2, 4, v3
    v_lshlrev_b32 v9, 12, v1
    v_lshl_add_u32 v9, v2, 4, v9
    s_lshl_b32 s25, s2, 6
    s_waitcnt lgkmcnt(0)
    s_barrier
    """)
    for j in range(7): a(f"ds_read2_b64 v[{X+4*j}:{X+4*j+3}], v3 offset0:{0} offset1:{1}\nv_add_u32 v3, {64*72}, v3")
    for j in range(7):
        a(f"s_waitcnt lgkmcnt({6-j})\nbuffer_store_dwordx4 v[{X+4*j}:{X+4*j+3}], v9, s[16:19], s25 offen sc1\ns_add_u32 s25, s25, {64*4096}")
    mark(a, 5)
    a(f"s_lshl_b32 s25, s2, 6\ns_add_u32 s25, s25, {FXN}")
    signal(a, SF, "s25", SN, 44)
```

```python
from asmlib import *
FG1 = 0; FXN = 0x4000; FCV = 0x8000
SPIN = 20000
def nonce_make(a):
    lab = a.label("nm")
    a(f"""
    s_cmp_lg_u32 s2, 0
    s_cbranch_scc1 {lab}
    s_load_dwordx2 s[62:63], s[0:1], {KA['dbg']}
    s_memrealtime s[60:61]
    s_waitcnt lgkmcnt(0)
    s_or_b32 s60, s60, 1
    v_mov_b32 v1, s60
    v_mov_b32 v2, 0
    v_cmp_eq_u32 vcc, 0, v0
    s_and_saveexec_b64 s[60:61], vcc
    s_cbranch_execz {lab}_r
    global_store_dword v2, v1, s[62:63] sc1
    {lab}_r:
    s_mov_b64 exec, s[60:61]
    {lab}:
    """)
def flag_srd(a, s):
    a(f"s_load_dwordx2 s[62:63], s[0:1], {KA['ws']}\ns_waitcnt lgkmcnt(0)")
    a.srd(s, 62, 0x10000, WS_FLAG)
def nonce_get(a, sN, vt):
    lab = a.label("ng")
    a(f"""
    s_load_dwordx2 s[62:63], s[0:1], {KA['dbg']}
    v_mov_b32 v{vt}, 0
    s_mov_b32 s61, {SPIN}
    s_waitcnt lgkmcnt(0)
    {lab}:
    global_load_dword v{vt+1}, v{vt}, s[62:63] sc1
    s_waitcnt vmcnt(0)
    v_readfirstlane_b32 s{sN}, v{vt+1}
    s_sub_u32 s61, s61, 1
    s_cbranch_scc1 {lab}_d
    s_cmp_eq_u32 s{sN}, 0
    s_cbranch_scc1 {lab}
    {lab}_d:
    """)
def signal(a, sF, sOffExpr, sN, vt):
    lab = a.label("sg")
    a(f"""
    s_waitcnt vmcnt(0)
    s_barrier
    v_cmp_eq_u32 vcc, 0, v0
    s_and_saveexec_b64 s[60:61], vcc
    s_cbranch_execz {lab}
    v_mov_b32 v{vt}, s{sN}
    v_mov_b32 v{vt+1}, 0
    buffer_store_dword v{vt}, v{vt+1}, s[{sF}:{sF+3}], {sOffExpr} offen sc1
    {lab}:
    s_mov_b64 exec, s[60:61]
    """)
def wait_flags(a, sF, sBase, n, stride, sN, sw, vt):
    lab = a.label("wf")
    a(f"""
    s_cmp_lg_u32 s{sw}, 0
    s_cbranch_scc1 {lab}_d
    v_min_u32 v{vt}, {n-1}, v2
    v_mul_u32_u24 v{vt}, {stride}, v{vt}
    s_mov_b32 s61, {SPIN}
    {lab}:
    buffer_load_dword v{vt+1}, v{vt}, s[{sF}:{sF+3}], {sBase} offen sc1
    s_sub_u32 s61, s61, 1
    s_cbranch_scc1 {lab}_d
    s_waitcnt vmcnt(0)
    v_cmp_ne_u32 vcc, s{sN}, v{vt+1}
    s_cbranch_vccnz {lab}
    {lab}_d:
    s_barrier
    """)

def nonce_issue(a, vN, sP=62):
    a(f"v_mov_b32 v{vN+1}, 0\nglobal_load_dword v{vN}, v{vN+1}, s[{sP}:{sP+1}] sc1")
def nonce_finish(a, sN, vN, sP=62):
    lab = a.label("nf")
    a(f"""
    s_waitcnt vmcnt(0)
    v_readfirstlane_b32 s{sN}, v{vN}
    s_mov_b32 s61, {SPIN}
    s_nop 1
    s_cmp_lg_u32 s{sN}, 0
    s_cbranch_scc1 {lab}_d
    {lab}:
    global_load_dword v{vN}, v{vN+1}, s[{sP}:{sP+1}] sc1
    s_waitcnt vmcnt(0)
    v_readfirstlane_b32 s{sN}, v{vN}
    s_sub_u32 s61, s61, 1
    s_cbranch_scc1 {lab}_d
    s_cmp_eq_u32 s{sN}, 0
    s_cbranch_scc1 {lab}
    {lab}_d:
    """)
def signal_n(a, sF, sOffExpr, sN, vt, nvm):
    lab = a.label("sg")
    a(f"""
    s_waitcnt vmcnt({nvm})
    s_barrier
    v_cmp_eq_u32 vcc, 0, v0
    s_and_saveexec_b64 s[60:61], vcc
    s_cbranch_execz {lab}
    v_mov_b32 v{vt}, s{sN}
    v_mov_b32 v{vt+1}, 0
    buffer_store_dword v{vt}, v{vt+1}, s[{sF}:{sF+3}], {sOffExpr} offen sc1
    {lab}:
    s_mov_b64 exec, s[60:61]
    """)
```

```python
import sys, os
from asmlib import *
from role_g1 import emit_g1
from role_kc import *
from role_g2 import *
from role_ln import *
from sync import *
ST = len(sys.argv) > 2 and sys.argv[2] == "1"
E = lambda k, d: int(os.environ.get(k, d))
G2M = E('G2M', 0); PF = E('PF', 0); PA = E('PA', 3); PA2 = E('PA2', PA); PA3 = E('PA3', PA2); PB = E('PB', 0); PB2 = E('PB2', PB); PC = E('PC', 3)
MK = stamp_mark if ST else (lambda a, i: None)
K = NAME + "_kernel"
hdr = open("cdna_kernels/" + NAME + ".s.ref").read().split("; Override")[0]
a = Asm()
NC, NB, NA = 64, 224, 224
a(f"; @launch grid=({NC+NB+NA},1,1) block=(256,1,1) lds=81920")
a('.amdgcn_target "amdgcn-amd-amdhsa--gfx950"\n.text')
a(kernel_header(K))
a(f"s_cmp_ge_u32 s2, {NC+NB+NA}\ns_cbranch_scc1 L_end")
if ST: stamp_begin(a)
a(f"s_cmp_ge_u32 s2, {NC+NB}\ns_cbranch_scc1 L_typeA")
a(f"s_cmp_ge_u32 s2, {NC}\ns_cbranch_scc1 L_typeB")
SN = 69; SF = 44
nonce_make(a)
if PC: a(f"s_setprio {PC}")
emit_ln(a, SF, SN, mark=MK)
MK(a, 6)
a("s_branch L_fin")
a(f"L_typeB:\ns_sub_u32 s2, s2, {NC}")
if PB: a(f"s_setprio {PB}")
a(f"s_load_dwordx2 s[62:63], s[0:1], {KA['dbg']}")
def xl(a):
    a.srd(SF, 42, 0x10000, WS_FLAG)
    nonce_issue(a, 130)
    a(f"""
    v_and_b32 v141, 31, v2
    v_lshlrev_b32 v141, 3, v141
    s_lshl_b32 s51, s25, 10
    s_lshl_b32 s52, s24, 8
    s_add_u32 s51, s51, s52
    s_add_u32 s51, s51, {FSTAT}
    buffer_load_dwordx2 v[142:143], v141, s[{SF}:{SF+3}], s51 offen sc1
    """)
def fin(a):
    nonce_finish(a, SN, 130)
    lab = a.label("gr")
    a(f"""
    v_cmp_ne_u32 vcc, s{SN}, v142
    s_cbranch_vccz {lab}_d
    s_mov_b32 s61, {SPIN}
    {lab}:
    buffer_load_dwordx2 v[142:143], v141, s[{SF}:{SF+3}], s51 offen sc1
    s_sub_u32 s61, s61, 1
    s_cbranch_scc1 {lab}_d
    s_waitcnt vmcnt(0)
    v_cmp_ne_u32 vcc, s{SN}, v142
    s_cbranch_vccnz {lab}
    {lab}_d:
    """)
emit_g1(a, coh="sc1", mark=MK, extra_load=xl, after_loop=fin, prefetch=PF, ext=143)
MK(a, 6)
a("s_lshl_b32 s33, s25, 10\ns_lshl_b32 s34, s26, 6\ns_add_u32 s33, s33, s34")
signal(a, SF, "s33", SN, 16)
MK(a, 7)
if PB2 != PB: a(f"s_setprio {PB2}")
emit_g2_setup(a)
def wact(a):
    a("s_lshr_b32 s34, s26, 1\ns_lshl_b32 s34, s34, 10")
    wait_flags(a, SF, "s34", 14, 64, SN, 24, 8)
    MK(a, 8)
emit_g2(a, coh="sc1", wait_act=wact, wait_st=None, mark=lambda a, i: (MK(a, {3: 1, 4: 2, 5: 3, 6: 5, 7: 4, 8: 6, 9: 7}[i]) if (i < 5 or G2M) else None), early=(SF, SN, FCV, SPIN))
a(f"s_add_u32 s2, s2, {NC}")
a("s_branch L_fin")
a(f"L_typeA:\ns_sub_u32 s2, s2, {NC+NB}")
if PA: a(f"s_setprio {PA}")
emit_kg_setup(a)
a.srd(32, 48, 1835008, WS_ST); a.srd(56, 48, 1835008, WS_XNT)
emit_xs_zero(a)
MK(a, 3)
emit_kg_channel(a, 0)
MK(a, 4)
if PA2 != PA: a(f"s_setprio {PA2}")
flag_srd(a, SF)
a(f"s_load_dwordx2 s[62:63], s[0:1], {KA['dbg']}\ns_waitcnt vmcnt(0) lgkmcnt(0)")
nonce_issue(a, 200)
def hk1(a):
    a(f"v_lshlrev_b32 v205, 6, v2\ns_mov_b32 s54, {FXN}\nbuffer_load_dword v204, v205, s[{SF}:{SF+3}], s54 offen sc1")
def hk2(a):
    nonce_finish(a, SN, 200)
    lab = a.label("xw")
    a(f"""
    v_cmp_ne_u32 vcc, s{SN}, v204
    s_cbranch_vccz {lab}_d
    s_mov_b32 s61, {SPIN}
    {lab}:
    buffer_load_dword v204, v205, s[{SF}:{SF+3}], s54 offen sc1
    s_sub_u32 s61, s61, 1
    s_cbranch_scc1 {lab}_d
    s_waitcnt vmcnt(0)
    v_cmp_ne_u32 vcc, s{SN}, v204
    s_cbranch_vccnz {lab}
    {lab}_d:
    """)
    emit_xs_issue(a, 208, coh="sc1")
emit_kg_channel(a, 1, wait=False, hook1=hk1, hook2=hk2)
MK(a, 5)
if PA3 != PA2: a(f"s_setprio {PA3}")
emit_xs_write(a, 208)
MK(a, 6)
a(f"""
s_cmp_eq_u32 s24, 0
s_cbranch_scc1 L_nopf
s_load_dwordx2 s[62:63], s[0:1], {KA['w2']}
s_lshr_b32 s54, s25, 3
s_mul_i32 s54, s54, {448*128}
v_subrev_u32 v202, 64, v0
v_lshlrev_b32 v202, 7, v202
s_waitcnt lgkmcnt(0)
""")
a.srd(64, 62, SZ['w2'])
a(f"""
s_add_u32 s55, s54, {192*128}
buffer_load_dword v203, v202, s[64:67], s54 offen
buffer_load_dword v203, v202, s[64:67], s55 offen
s_add_u32 s55, s54, {384*128}
v_cmp_gt_u32 vcc, {64+64}, v0
s_and_saveexec_b64 s[60:61], vcc
s_cbranch_execz L_nopf2
buffer_load_dword v203, v202, s[64:67], s55 offen
L_nopf2:
s_mov_b64 exec, s[60:61]
L_nopf:
""")
a("s_waitcnt lgkmcnt(0)\ns_barrier")
MK(a, 7)
emit_cv(a, coh="sc1")
MK(a, 8)
a(f"s_lshl_b32 s54, s25, 6\ns_add_u32 s54, s54, {FCV}")
signal(a, SF, "s54", SN, 88)
a(f"s_add_u32 s2, s2, {NC+NB}")
a("L_fin:")
if ST: stamp_end(a, 0)
a("L_end:\ns_endpgm")
a('.section .rodata,"a"')
a(kernel_desc(K, 256 if ST else 224))
open(sys.argv[1], "w").write(hdr + a.text())
```

```python
from asmlib import *
import os
XW = os.environ.get('XW', '')

def emit_g2_setup(a, wg="s2"):
    sw, srb, stb, sdb, sT0, sT1 = 24, 25, 26, 27, 31, 32
    a(f"""
    s_load_dwordx2 s[36:37], s[0:1], {KA['u']}
    s_load_dwordx2 s[38:39], s[0:1], {KA['w2']}
    s_load_dwordx2 s[40:41], s[0:1], {KA['out']}
    s_load_dwordx2 s[42:43], s[0:1], {KA['ws']}
    v_lshrrev_b32 v1, 6, v0
    v_and_b32 v2, 63, v0
    s_and_b32 s{sT0}, {wg}, 7
    s_lshr_b32 s{sT1}, {wg}, 3
    v_readfirstlane_b32 s{sw}, v1
    s_lshl_b32 s{stb}, s{sT0}, 2
    s_and_b32 s{sT0}, s{sT1}, 3
    s_add_u32 s{stb}, s{stb}, s{sT0}
    s_lshr_b32 s{sdb}, s{sT1}, 2
    s_waitcnt lgkmcnt(0)
    """)
    if os.environ.get('BADMAP', '0') == '1':
        a(f"s_mul_i32 s{sT0}, {wg}, 9363\ns_lshr_b32 s{stb}, s{sT0}, 16\ns_mul_i32 s{sT0}, s{stb}, 7\ns_sub_u32 s{sdb}, {wg}, s{sT0}")
    a.srd(4, 36, SZ['u']); a.srd(8, 38, SZ['w2']); a.srd(12, 42, 7340032, WS_ACT); a.srd(16, 42, 1835008, WS_ST); a.srd(20, 40, SZ['out'])

def emit_g2(a, coh="", wait_act=None, wait_st=None, mark=lambda a, i: None, early=None):
    sw, stb, sdb, sT0, sT1 = 24, 26, 27, 31, 32
    ACC = 64
    ACT = 128
    AF = [16, 24]
    vWo, vAo, vA0, vA1 = 4, 5, 6, 7
    NS = 8; P = 7
    sAo0, sAo1, sWo, sM = 28, 29, 30, 33
    a(f"""
    v_lshrrev_b32 v8, 3, v2
    v_mul_u32_u24 v{vWo}, 896, v8
    v_lshrrev_b32 v9, 2, v2
    v_and_b32 v9, 1, v9
    v_lshrrev_b32 v10, 4, v2
    v_and_b32 v10, 1, v10
    v_xor_b32 v9, v9, v10
    v_lshl_add_u32 v{vWo}, v9, 6, v{vWo}
    v_and_b32 v9, 3, v2
    v_lshl_add_u32 v{vWo}, v9, 4, v{vWo}
    v_lshlrev_b32 v{vAo}, 4, v2
    s_lshl_b32 s{sT0}, s{stb}, 1
    s_mul_i32 s{sT0}, s{sT0}, 112
    s_mul_i32 s{sT1}, s{sw}, 28
    s_add_u32 s{sT0}, s{sT0}, s{sT1}
    s_lshl_b32 s{sAo0}, s{sT0}, 10
    s_add_u32 s{sAo1}, s{sAo0}, {112*1024}
    s_mul_i32 s{sWo}, s{sT1}, {16*896}
    s_lshl_b32 s{sT0}, s{sdb}, 7
    s_add_u32 s{sWo}, s{sWo}, s{sT0}
    s_lshl_b32 s{sM}, s{sw}, 14
    """)
    a(f"""
    v_and_b32 v8, 15, v2
    v_lshrrev_b32 v9, 2, v8
    v_and_b32 v10, 3, v8
    v_lshrrev_b32 v11, 5, v2
    v_lshl_add_u32 v11, v11, 2, v9
    v_lshlrev_b32 v11, 7, v11
    v_lshl_add_u32 v11, v10, 3, v11
    v_lshrrev_b32 v12, 4, v2
    v_and_b32 v12, 1, v12
    v_lshl_add_u32 v11, v12, 5, v11
    v_lshrrev_b32 v9, 1, v9
    v_lshl_add_u32 v{vA0}, v9, 6, v11
    v_xor_b32 v9, 1, v9
    v_lshl_add_u32 v{vA1}, v9, 6, v11
    v_add_u32 v{vA0}, s{sM}, v{vA0}
    v_add_u32 v{vA1}, s{sM}, v{vA1}
    """)
    def wload(k):
        slot = k % NS
        a(f"""
        s_add_u32 m0, s{sM}, {slot*2048}
        s_add_u32 s{sT0}, s{sWo}, {k*16*896}
        buffer_load_dwordx4 v{vWo}, s[8:11], s{sT0} offen lds
        s_add_u32 m0, s{sM}, {slot*2048+1024}
        s_add_u32 s{sT0}, s{sT0}, {8*896}
        buffer_load_dwordx4 v{vWo}, s[8:11], s{sT0} offen lds
        """)
    def aload(k):
        slot = k % NS
        R = ACT + 8 * slot
        a(f"""
        s_add_u32 s{sT0}, s{sAo0}, {k*1024}
        s_add_u32 s{sT1}, s{sAo1}, {k*1024}
        buffer_load_dwordx4 v[{R}:{R+3}], v{vAo}, s[12:15], s{sT0} offen {coh}
        buffer_load_dwordx4 v[{R+4}:{R+7}], v{vAo}, s[12:15], s{sT1} offen {coh}
        """)
    KP = 13
    E2 = bool(early) and os.environ.get('E2', '1') == '1'
    if E2:
        sF, sN, FCVo, SPINN = early
        a(f"""
        v_and_b32 v9, 31, v2
        v_lshrrev_b32 v10, 5, v2
        v_lshlrev_b32 v11, 14, v10
        v_and_b32 v12, 30, v2
        v_lshl_add_u32 v11, v12, 1, v11
        v_mul_u32_u24 v14, 896, v9
        v_lshl_add_u32 v14, v10, 3, v14
        v_min_u32 v193, 15, v2
        v_lshlrev_b32 v193, 6, v193
        s_lshr_b32 s{sT0}, s{sw}, 1
        s_and_b32 s{sT1}, s{sw}, 1
        s_lshl_b32 s48, s{sdb}, 1
        s_add_u32 s48, s48, s{sT0}
        s_lshl_b32 s49, s{stb}, 1
        s_add_u32 s49, s49, s{sT1}
        s_mul_i32 s50, s49, {32*896}
        s_lshl_b32 s51, s48, 6
        s_add_u32 s50, s50, s51
        s_lshl_b32 s51, s49, 6
        s_lshl_b32 s49, s48, 10
        s_add_u32 s49, s49, {FCVo}
        s_lshl_b32 s48, s48, 17
        s_add_u32 s48, s48, s51
        """)
    elif early:
        sF, sN, FCVo, SPINN = early
        a(f"""
        v_lshrrev_b32 v9, 2, v0
        v_and_b32 v10, 3, v0
        v_lshlrev_b32 v11, 12, v9
        v_lshl_add_u32 v11, v10, 5, v11
        v_lshrrev_b32 v12, 3, v0
        v_and_b32 v13, 7, v0
        v_mul_u32_u24 v14, 896, v12
        v_lshl_add_u32 v14, v13, 4, v14
        v_min_u32 v193, 7, v2
        v_lshlrev_b32 v193, 6, v193
        s_lshl_b32 s{sT0}, s{sdb}, 18
        s_lshl_b32 s{sT1}, s{stb}, 7
        s_add_u32 s48, s{sT0}, s{sT1}
        s_mul_i32 s{sT0}, s{stb}, {64*896}
        s_lshl_b32 s{sT1}, s{sdb}, 7
        s_add_u32 s50, s{sT0}, s{sT1}
        s_add_u32 s51, s50, {32*896}
        s_lshl_b32 s{sT0}, s{sdb}, 11
        s_lshl_b32 s{sT1}, s{sw}, 9
        s_add_u32 s49, s{sT0}, s{sT1}
        s_add_u32 s49, s49, {FCVo}
        """)
    for k in range(P): wload(k)
    for i in range(64): a(f"v_mov_b32 v{ACC+i}, 0")
    if wait_act: wait_act(a)
    for k in range(P): aload(k)
    APF = 0
    if os.environ.get('APF', '1') == '1':
        a(f"""
        s_lshl_b32 s{sT0}, s{stb}, 1
        s_mul_i32 s{sT0}, s{sT0}, {112*1024}
        s_lshl_b32 s{sT1}, s{sdb}, 15
        s_add_u32 s{sT0}, s{sT0}, s{sT1}
        v_lshlrev_b32 v9, 7, v0
        buffer_load_dword v194, v9, s[12:15], s{sT0} offen {coh}
        """)
        APF = 1
    def reads(k):
        slot = k % NS; F = AF[k % 2]
        for dt, va in ((0, vA0), (1, vA1)):
            for q in range(2):
                a(f"ds_read_b64_tr_b16 v[{F+4*dt+2*q}:{F+4*dt+2*q+1}], v{va} offset:{slot*2048+q*1024}")
    def outstanding_after(k):
        if k < P: return 2 * (P - 1 - k) + 4 * min(k, 28 - P)
        return 4 * (min(k + P, 28) - 1 - k)
    a(f"s_waitcnt vmcnt({outstanding_after(0) + APF})")
    mark(a, 3)
    reads(0)
    def read_list(k):
        slot = k % NS; F = AF[k % 2]
        return [f"ds_read_b64_tr_b16 v[{F+4*dt+2*q}:{F+4*dt+2*q+1}], v{va} offset:{slot*2048+q*1024}" for dt, va in ((0, vA0), (1, vA1)) for q in range(2)]
    a(f"s_add_u32 s52, s{sWo}, {P*16*896}\ns_add_u32 s53, s{sAo0}, {P*1024}\ns_add_u32 s54, s{sAo1}, {P*1024}\nv_add_u32 v15, {8*896}, v{vWo}")
    for k in range(28):
        R1 = []
        if k + 1 < 28:
            if k + 1 < P:
                n = 2 * (P - 1 - (k + 1)) + 4 * min(k, 28 - P) + APF
            else:
                n = 4 * (min(k - 1 + P, 27) - (k + 1))
            if early:
                if k > KP and k + 1 <= KP + P: n += 1
                if k > 27 - P: n += (20 if E2 else 4)
            a(f"s_waitcnt vmcnt({n}) lgkmcnt(2)")
            R1 = read_list(k + 1)
        else:
            a("s_waitcnt lgkmcnt(2)")
        pf = k + P < 28
        pfw = pf and 'w' not in XW; pfa = pf and 'a' not in XW
        if 'r' in XW: R1 = ["s_nop 0"] * len(R1)
        slot = (k + P) % NS
        RA = ACT + 8 * slot
        F = AF[k % 2]; R = ACT + 8 * (k % NS)
        def mf(dt, tt):
            D = ACC + 16 * (2 * dt + tt)
            a(f"v_mfma_f32_32x32x16_bf16 v[{D}:{D+15}], v[{F+4*dt}:{F+4*dt+3}], v[{R+4*tt}:{R+4*tt+3}], v[{D}:{D+15}]")
        mf(0, 0)
        if pfw: a(f"s_add_u32 m0, s{sM}, {slot*2048}")
        for r in R1[0:2]: a(r)
        if pfw: a(f"buffer_load_dwordx4 v{vWo}, s[8:11], s52 offen lds")
        mf(0, 1)
        if pfw: a(f"s_add_u32 m0, s{sM}, {slot*2048+1024}")
        for r in R1[2:4]: a(r)
        if pfw: a(f"buffer_load_dwordx4 v15, s[8:11], s52 offen lds\ns_add_u32 s52, s52, {16*896}")
        a(f"s_waitcnt lgkmcnt({len(R1)})")
        mf(1, 0)
        if pfa: a(f"buffer_load_dwordx4 v[{RA}:{RA+3}], v{vAo}, s[12:15], s53 offen {coh}\ns_add_u32 s53, s53, 1024")
        mf(1, 1)
        if pfa: a(f"buffer_load_dwordx4 v[{RA+4}:{RA+7}], v{vAo}, s[12:15], s54 offen {coh}\ns_add_u32 s54, s54, 1024")
        if early and k == KP:
            a(f"buffer_load_dword v192, v193, s[{sF}:{sF+3}], s49 offen sc1")
        if early and k == 27 - P:
            lab = a.label("es")
            mark(a, 5)
            a(f"""
            v_cmp_ne_u32 vcc, s{sN}, v192
            s_cbranch_vccz {lab}_d
            s_mov_b32 s61, {SPINN}
            {lab}:
            buffer_load_dword v192, v193, s[{sF}:{sF+3}], s49 offen sc1
            s_sub_u32 s61, s61, 1
            s_cbranch_scc1 {lab}_d
            s_waitcnt vmcnt(0)
            v_cmp_ne_u32 vcc, s{sN}, v192
            s_cbranch_vccnz {lab}
            {lab}_d:
            """)
            mark(a, 6)
            if E2:
                for r in range(16):
                    row = 8 * (r // 4) + r % 4
                    a(f"s_add_u32 s51, s48, {row*4096}\nbuffer_load_dword v{196+r}, v11, s[16:19], s51 offen {coh}")
                for g in range(4):
                    a(f"buffer_load_dwordx2 v[{212+2*g}:{213+2*g}], v14, s[4:7], s50 offen offset:{16*g}")
            else:
                a(f"""
                buffer_load_dwordx4 v[196:199], v11, s[16:19], s48 offen {coh}
                buffer_load_dwordx4 v[200:203], v11, s[16:19], s48 offen offset:16 {coh}
                buffer_load_dwordx4 v[204:207], v14, s[4:7], s50 offen
                buffer_load_dwordx4 v[208:211], v14, s[4:7], s51 offen
                """)
    mark(a, 4)
    if E2:
        T = 16
        a(f"""
        v_lshlrev_b32 v8, 4, v2
        v_add_u32 v9, s{sM}, v8
        s_lshl_b32 s{sT0}, s{sw}, 12
        v_add_u32 v8, s{sT0}, v8
        s_mov_b32 s52, {f2u(-1.4426950408889634)}
        s_mov_b32 s53, {f2u(-1.4426950408889634)}
        s_mov_b32 s54, 1.0
        s_mov_b32 s55, 1.0
        v_and_b32 v10, 1, v2
        v_lshlrev_b32 v10, 4, v10
        v_sub_u32 v10, 16, v10
        s_nop 7
        """)
        for q in range(4):
            l1 = a.label("qx"); l2 = a.label("qy")
            a(f"s_cmp_eq_u32 s{sw}, {q}\ns_cbranch_scc1 {l1}")
            for j in range(4): a(f"ds_write_b128 v9, v[{ACC+16*q+4*j}:{ACC+16*q+4*j+3}] offset:{q*4096+j*1024}")
            a(f"s_branch {l2}\n{l1}:")
            for i in range(16): a(f"v_mov_b32 v{T+i}, v{ACC+16*q+i}")
            a(f"{l2}:")
        for i in range(1, 4):
            a(f"s_add_u32 s{sT0}, s{sw}, {i}\ns_and_b32 s{sT0}, s{sT0}, 3\ns_lshl_b32 s{sT0}, s{sT0}, 14\nv_add_u32 v{4+i}, s{sT0}, v8")
        a("s_waitcnt lgkmcnt(0)\ns_barrier")
        mark(a, 7)
        for i in range(1, 4):
            for j in range(4): a(f"ds_read_b128 v[{64+16*(i-1)+4*j}:{64+16*(i-1)+4*j+3}], v{4+i} offset:{j*1024}")
        a("s_waitcnt vmcnt(0)")
        for r in range(16): a(f"v_lshlrev_b32 v{196+r}, v10, v{196+r}")
        for r in range(16): a(f"v_and_b32 v{196+r}, 0xffff0000, v{196+r}")
        a("s_waitcnt lgkmcnt(8)")
        for i in range(0, 16, 2): a(f"v_pk_add_f32 v[{T+i}:{T+i+1}], v[{T+i}:{T+i+1}], v[{64+i}:{64+i+1}]")
        a("s_waitcnt lgkmcnt(0)")
        for i in range(0, 16, 2): a(f"v_pk_add_f32 v[{80+i}:{80+i+1}], v[{80+i}:{80+i+1}], v[{96+i}:{96+i+1}]")
        for i in range(0, 16, 2): a(f"v_pk_add_f32 v[{T+i}:{T+i+1}], v[{T+i}:{T+i+1}], v[{80+i}:{80+i+1}]")
        Y = 64
        mark(a, 8)
        for i in range(0, 16, 2): a(f"v_cvt_pk_bf16_f32 v{Y+i}, v{T+i}, v{T+i+1}")
        for i in range(0, 16, 2): a(f"v_lshlrev_b32 v{T+i}, 16, v{Y+i}\nv_and_b32 v{T+i+1}, 0xffff0000, v{Y+i}")
        for i in range(0, 16, 2): a(f"v_pk_mul_f32 v[{Y+i}:{Y+i+1}], v[{T+i}:{T+i+1}], s[52:53]")
        for i in range(16): a(f"v_exp_f32 v{Y+i}, v{Y+i}")
        for i in range(0, 16, 2): a(f"v_pk_add_f32 v[{Y+i}:{Y+i+1}], v[{Y+i}:{Y+i+1}], s[54:55]")
        for i in range(16): a(f"v_rcp_f32 v{Y+i}, v{Y+i}")
        for i in range(0, 16, 2): a(f"v_pk_mul_f32 v[{T+i}:{T+i+1}], v[{T+i}:{T+i+1}], v[{Y+i}:{Y+i+1}]")
        for i in range(0, 16, 2): a(f"v_cvt_pk_bf16_f32 v{Y+i}, v{T+i}, v{T+i+1}")
        for i in range(0, 16, 2): a(f"v_lshlrev_b32 v{T+i}, 16, v{Y+i}\nv_and_b32 v{T+i+1}, 0xffff0000, v{Y+i}")
        for i in range(0, 16, 2): a(f"v_pk_mul_f32 v[{T+i}:{T+i+1}], v[{T+i}:{T+i+1}], v[{196+i}:{197+i}]")
        for i in range(0, 16, 2): a(f"v_cvt_pk_bf16_f32 v{Y+i}, v{T+i}, v{T+i+1}")
        for i in range(0, 16, 2): a(f"v_lshlrev_b32 v{T+i}, 16, v{Y+i}\nv_and_b32 v{T+i+1}, 0xffff0000, v{Y+i}")
        for i in range(0, 16, 2):
            X = 212 + i // 2
            a(f"v_lshlrev_b32 v{Y+i}, 16, v{X}\nv_and_b32 v{Y+i+1}, 0xffff0000, v{X}")
        for i in range(0, 16, 2): a(f"v_pk_add_f32 v[{T+i}:{T+i+1}], v[{T+i}:{T+i+1}], v[{Y+i}:{Y+i+1}]")
        mark(a, 9)
        for g in range(4):
            a(f"v_cvt_pk_bf16_f32 v{Y+2*g}, v{T+4*g}, v{T+4*g+1}\nv_cvt_pk_bf16_f32 v{Y+2*g+1}, v{T+4*g+2}, v{T+4*g+3}")
            a(f"buffer_store_dwordx2 v[{Y+2*g}:{Y+2*g+1}], v14, s[20:23], s50 offen offset:{16*g}")
        return
    a("s_nop 15\ns_barrier")
    a(f"""
    v_and_b32 v8, 31, v2
    v_lshrrev_b32 v9, 5, v2
    v_mul_u32_u24 v8, 272, v8
    v_lshl_add_u32 v8, v9, 4, v8
    s_mul_i32 s{sT0}, s{sw}, 17408
    v_add_u32 v8, s{sT0}, v8
    """)
    for dt in range(2):
        for tt in range(2):
            D = ACC + 16 * (2 * dt + tt)
            for j in range(4):
                a(f"ds_write_b128 v8, v[{D+4*j}:{D+4*j+3}] offset:{tt*32*272 + dt*128 + j*32}")
    if wait_st: wait_st(a)
    LST = 69632
    if not early:
        a(f"""
        v_lshrrev_b32 v9, 2, v0
        v_and_b32 v10, 3, v0
        v_lshlrev_b32 v11, 12, v9
        v_lshl_add_u32 v11, v10, 5, v11
        s_lshl_b32 s{sT0}, s{sdb}, 18
        s_lshl_b32 s{sT1}, s{stb}, 7
        s_add_u32 s{sT0}, s{sT0}, s{sT1}
        buffer_load_dwordx4 v[16:19], v11, s[16:19], s{sT0} offen {coh}
        buffer_load_dwordx4 v[20:23], v11, s[16:19], s{sT0} offen offset:16 {coh}
        v_lshrrev_b32 v12, 3, v0
        v_and_b32 v13, 7, v0
        v_mul_u32_u24 v14, 896, v12
        v_lshl_add_u32 v14, v13, 4, v14
        s_mul_i32 s{sT0}, s{stb}, {64*896}
        s_lshl_b32 s{sT1}, s{sdb}, 7
        s_add_u32 s34, s{sT0}, s{sT1}
        s_add_u32 s35, s34, {32*896}
        buffer_load_dwordx4 v[24:27], v14, s[4:7], s34 offen
        buffer_load_dwordx4 v[28:31], v14, s[4:7], s35 offen
        v_mul_u32_u24 v9, 144, v9
        v_lshl_add_u32 v9, v10, 5, v9
        v_add_u32 v9, {LST}, v9
        s_waitcnt vmcnt(2)
        ds_write_b128 v9, v[16:19]
        ds_write_b128 v9, v[20:23] offset:16
        s_waitcnt lgkmcnt(0)
        s_barrier
        """)
    else:
        a(f"""
        s_mov_b32 s34, s50
        s_mov_b32 s35, s51
        v_lshrrev_b32 v9, 2, v0
        v_and_b32 v10, 3, v0
        v_mul_u32_u24 v9, 144, v9
        v_lshl_add_u32 v9, v10, 5, v9
        v_add_u32 v9, {LST}, v9
        s_waitcnt vmcnt(2)
        ds_write_b128 v9, v[196:199]
        ds_write_b128 v9, v[200:203] offset:16
        s_waitcnt lgkmcnt(0)
        s_barrier
        """)
    a(f"""
    v_mul_u32_u24 v9, 272, v12
    v_lshl_add_u32 v9, v13, 5, v9
    v_mul_u32_u24 v10, {8*144}, v13
    v_lshl_add_u32 v10, v12, 1, v10
    v_add_u32 v10, {LST}, v10
    """)
    for p in range(2):
        G = 64
        for w in range(4):
            a(f"ds_read_b128 v[{G+8*w}:{G+8*w+3}], v9 offset:{w*17408 + p*32*272}")
            a(f"ds_read_b128 v[{G+8*w+4}:{G+8*w+7}], v9 offset:{w*17408 + p*32*272 + 16}")
        for e in range(8):
            a(f"ds_read_u16 v{96+e}, v10 offset:{e*144 + p*64}")
        a("s_waitcnt lgkmcnt(0)")
        for e in range(8):
            a(f"v_add_f32 v{G+e}, v{G+e}, v{G+8+e}\nv_add_f32 v{G+16+e}, v{G+16+e}, v{G+24+e}")
        for e in range(8):
            a(f"v_add_f32 v{G+e}, v{G+e}, v{G+16+e}")
        for e in range(0, 8, 2):
            a(f"v_cvt_pk_bf16_f32 v{72+e}, v{G+e}, v{G+e+1}")
            a(f"v_lshlrev_b32 v{G+e}, 16, v{72+e}\nv_and_b32 v{G+e+1}, 0xffff0000, v{72+e}")
        for e in range(8): a(f"v_mul_f32 v{72+e}, {f2u(-1.4426950408889634)}, v{G+e}")
        for e in range(8): a(f"v_exp_f32 v{72+e}, v{72+e}")
        for e in range(8): a(f"v_add_f32 v{72+e}, 1.0, v{72+e}")
        for e in range(8): a(f"v_rcp_f32 v{72+e}, v{72+e}")
        for e in range(8): a(f"v_mul_f32 v{G+e}, v{G+e}, v{72+e}")
        for e in range(0, 8, 2):
            a(f"v_cvt_pk_bf16_f32 v{72+e}, v{G+e}, v{G+e+1}")
            a(f"v_lshlrev_b32 v{G+e}, 16, v{72+e}\nv_and_b32 v{G+e+1}, 0xffff0000, v{72+e}")
        for e in range(8): a(f"v_lshlrev_b32 v{96+e}, 16, v{96+e}\nv_mul_f32 v{G+e}, v{G+e}, v{96+e}")
        if p == 0: a("s_waitcnt vmcnt(0)" if early else "s_waitcnt vmcnt(1)")
        elif not early: a("s_waitcnt vmcnt(1)")
        X = (204 if early else 24) + 4 * p
        for e in range(0, 8, 2):
            a(f"v_cvt_pk_bf16_f32 v{72+e}, v{G+e}, v{G+e+1}")
            a(f"v_lshlrev_b32 v{G+e}, 16, v{72+e}\nv_and_b32 v{G+e+1}, 0xffff0000, v{72+e}")
            a(f"v_lshlrev_b32 v{80+e}, 16, v{X+e//2}\nv_and_b32 v{81+e}, 0xffff0000, v{X+e//2}")
            a(f"v_add_f32 v{G+e}, v{G+e}, v{80+e}\nv_add_f32 v{G+e+1}, v{G+e+1}, v{81+e}")
            a(f"v_cvt_pk_bf16_f32 v{104+4*p+e//2}, v{G+e}, v{G+e+1}")
        a(f"buffer_store_dwordx4 v[{104+4*p}:{107+4*p}], v14, s[20:23], s{34+p} offen")
```

```python
from asmlib import *
import os
XV = os.environ.get('XV', '')

def emit_g1(a, coh="", wg="s2", done=None, mark=lambda a, i: None, prefetch=True, extra_load=None, after_loop=None, mid_sig=None, mid_j=2, ext=None):
    ACC = 64
    AS = [16, 32]; BS = [48, 52]
    vA = [4, 5, 6, 7]; vB = [8, 9]; vXo = 10; vWo = 11
    vA4 = [132, 133, 134, 135]; vB4 = [136, 137]; vXo2 = 138; vWo2 = 139
    NST = 5
    NEX = (2 if ext else 1) + int(os.environ.get('TCH', '0'))
    GR = 140; SX = 156; CS = 160; SEL = 164
    vSum, vSq, vCs = 12, 13, 14
    vOnes = 15
    vB1 = 60
    sU, sW1, sACT, sXNT, sBB = 4, 8, 12, 16, 20
    sw, srb, sfs, sCC, sXb, sWb, sM, sT0, sT1 = 24, 25, 26, 27, 28, 29, 30, 31, 32
    a(f"""
    s_load_dwordx2 s[36:37], s[0:1], {KA['u']}
    s_load_dwordx2 s[38:39], s[0:1], {KA['w1']}
    s_load_dwordx2 s[40:41], s[0:1], {KA['b1']}
    s_load_dwordx2 s[42:43], s[0:1], {KA['ws']}
    v_lshrrev_b32 v1, 6, v0
    v_and_b32 v2, 63, v0
    s_and_b32 s{sT0}, {wg}, 7
    s_lshr_b32 s{sT1}, {wg}, 3
    v_readfirstlane_b32 s{sw}, v1
    s_and_b32 s{srb}, s{sT0}, 3
    s_lshl_b32 s{srb}, s{srb}, 2
    s_and_b32 s33, s{sT1}, 3
    s_add_u32 s{srb}, s{srb}, s33
    s_lshr_b32 s{sT0}, s{sT0}, 2
    s_mul_i32 s{sT0}, s{sT0}, 7
    s_lshr_b32 s{sT1}, s{sT1}, 2
    s_add_u32 s{sfs}, s{sT0}, s{sT1}
    """)
    a(f"""
    v_lshrrev_b32 v3, 2, v2
    v_mul_u32_u24 v{vXo}, 896, v3
    v_and_b32 v56, 3, v2
    v_lshrrev_b32 v57, 4, v2
    v_and_b32 v57, 3, v57
    v_xor_b32 v58, v56, v57
    v_lshl_add_u32 v{vXo}, v58, 4, v{vXo}
    v_lshrrev_b32 v58, 4, v2
    v_mul_u32_u24 v{vWo}, 3584, v58
    v_lshrrev_b32 v59, 2, v2
    v_and_b32 v59, 3, v59
    v_xor_b32 v59, v59, v57
    v_lshl_add_u32 v{vWo}, v59, 6, v{vWo}
    v_lshl_add_u32 v{vWo}, v56, 4, v{vWo}
    s_waitcnt lgkmcnt(0)
    """)
    a.srd(sU, 36, SZ['u']); a.srd(sW1, 38, SZ['w1']); a.srd(sBB, 40, SZ['b1'])
    a.srd(sACT, 42, 7340032, WS_ACT); a.srd(sXNT, 42, 1835008, WS_XNT)
    a(f"""
    s_mul_i32 s{sXb}, s{srb}, 114688
    s_mul_i32 s{sT0}, s{sw}, 28672
    s_add_u32 s{sXb}, s{sXb}, s{sT0}
    s_mul_i32 s{sWb}, s{sw}, 28672
    s_lshl_b32 s{sT0}, s{sfs}, 8
    s_add_u32 s{sWb}, s{sWb}, s{sT0}
    s_lshl_b32 s{sM}, s{sw}, 11
    s_add_u32 s{sCC}, s{sfs}, 1
    s_cmp_eq_u32 s{sCC}, 14
    s_cselect_b32 s{sCC}, 0, s{sCC}
    """)
    a(f"""
    v_add_u32 v{vXo2}, 14336, v{vXo}
    v_add_u32 v{vWo2}, 14336, v{vWo}
    s_lshl_b32 s{sT0}, s{sCC}, 6
    s_add_u32 s48, s{sXb}, s{sT0}
    s_mul_i32 s{sT0}, s{sCC}, 114688
    s_add_u32 s49, s{sWb}, s{sT0}
    s_add_u32 s50, s{sXb}, {14*64}
    """)
    def dma_parts(stage):
        return [
        (f"s_add_u32 m0, s{sM}, {stage*16384}", f"buffer_load_dwordx4 v{vXo}, s[{sU}:{sU+3}], s48 offen lds"),
        (f"s_add_u32 m0, s{sM}, {stage*16384+1024}", f"buffer_load_dwordx4 v{vXo2}, s[{sU}:{sU+3}], s48 offen lds\ns_add_u32 s48, s48, 64"),
        (f"s_add_u32 m0, s{sM}, {stage*16384+8192}", f"buffer_load_dwordx4 v{vWo}, s[{sW1}:{sW1+3}], s49 offen lds"),
        (f"s_add_u32 m0, s{sM}, {stage*16384+8192+1024}", f"buffer_load_dwordx4 v{vWo2}, s[{sW1}:{sW1+3}], s49 offen lds\ns_add_u32 s49, s49, 114688\ns_cmp_eq_u32 s48, s50\ns_cselect_b32 s48, s{sXb}, s48\ns_cselect_b32 s49, s{sWb}, s49"),
        ]
    def dma(stage):
        for m, l in dma_parts(stage): a(m); a("s_nop 0"); a(l)
    a(f"""
    v_and_b32 v56, 31, v2
    v_lshlrev_b32 v56, 1, v56
    s_lshl_b32 s{sT0}, s{sfs}, 8
    """)
    for j in range(4):
        a(f"""
        s_add_u32 s{sT1}, s{sw}, {j}
        s_and_b32 s{sT1}, s{sT1}, 3
        s_lshl_b32 s{sT1}, s{sT1}, 6
        s_add_u32 s{sT1}, s{sT1}, s{sT0}
        buffer_load_ushort v{vB1+j}, v56, s[{sBB}:{sBB+3}], s{sT1} offen
        """)
    NPF = 0; NPF0 = 0
    def pf_old():
        a(f"""
        v_lshrrev_b32 v56, 1, v2
        v_and_b32 v57, 1, v2
        v_mul_u32_u24 v58, 896, v56
        v_lshl_add_u32 v58, v57, 7, v58
        v_mul_u32_u24 v59, 3584, v56
        v_lshl_add_u32 v59, v57, 7, v59
        s_mul_i32 s{sT1}, s{sw}, {112*3584}
        s_lshl_b32 s33, s{sfs}, 8
        s_add_u32 s{sT1}, s{sT1}, s33
        """)
        for i in range(4):
            a(f"s_add_u32 s33, s{sXb}, {256*i}\nbuffer_load_dword v128, v58, s[{sU}:{sU+3}], s33 offen")
            a(f"s_add_u32 s33, s{sT1}, {32*3584*i}\nbuffer_load_dword v128, v59, s[{sW1}:{sW1+3}], s33 offen")
    def pf_new():
        a(f"""
        v_mul_u32_u24 v58, 896, v0
        v_mov_b32 v59, 0x7ffffff0
        v_cmp_gt_u32 vcc, 128, v0
        s_cmp_ge_u32 s{sfs}, 7
        s_cselect_b32 s33, 7, 0
        s_sub_u32 s33, s{sfs}, s33
        s_lshl_b32 s33, s33, 7
        s_mul_i32 s34, s{srb}, 114688
        s_add_u32 s33, s33, s34
        v_cndmask_b32 v58, v59, v58, vcc
        v_lshrrev_b32 v56, 1, v0
        v_and_b32 v57, 1, v0
        v_mul_u32_u24 v56, 3584, v56
        v_lshl_add_u32 v56, v57, 7, v56
        v_cmp_gt_u32 vcc, 224, v0
        s_and_b32 s34, s{srb}, 3
        s_mul_i32 s34, s34, {112*3584}
        s_lshl_b32 s35, s{sfs}, 8
        s_add_u32 s34, s34, s35
        v_cndmask_b32 v56, v59, v56, vcc
        """)
        if prefetch != 6: a(f"buffer_load_dword v128, v58, s[{sU}:{sU+3}], s33 offen")
        a(f"buffer_load_dword v128, v56, s[{sW1}:{sW1+3}], s34 offen")
    if prefetch == 3:
        pf_old(); a("s_waitcnt vmcnt(0)\ns_barrier"); mark(a, 7)
        for c in range(NST): dma(c)
    elif prefetch == 2:
        dma(0); dma(1); pf_new(); dma(2); dma(3); dma(4); NPF0 = 2
    elif prefetch in (6, 7):
        for c in range(NST): dma(c)
        pf_new(); NPF0 = 1 if prefetch == 6 else 2
    elif prefetch in (8, 9):
        for c in range(prefetch - 7): dma(c)
        NPF0 = 2
    else:
        for c in range(NST): dma(c)
    if os.environ.get('TOUCH', '0') == '1':
        a(f"""
        s_lshl_b32 s33, s{srb}, 2
        s_add_u32 s33, s33, s{sw}
        s_mul_i32 s33, s33, 112
        s_lshl_b32 s34, s{sfs}, 3
        s_add_u32 s33, s33, s34
        s_lshl_b32 s33, s33, 10
        v_lshlrev_b32 v56, 7, v2
        s_lshl_b32 s34, s{sfs}, 17
        s_lshl_b32 s35, s{srb}, 8
        s_add_u32 s34, s34, s35
        v_lshrrev_b32 v57, 3, v0
        v_lshlrev_b32 v57, 12, v57
        buffer_load_dword v128, v56, s[{sACT}:{sACT+3}], s33 offen sc1
        buffer_load_dword v128, v57, s[{sXNT}:{sXNT+3}], s34 offen sc1
        """)
        NPF0 += 2
    a(f"""
    v_and_b32 v56, 31, v2
    v_lshrrev_b32 v57, 5, v2
    v_lshrrev_b32 v58, 2, v56
    v_and_b32 v58, 3, v58
    v_xor_b32 v58, v58, v57
    v_lshlrev_b32 v58, 4, v58
    v_lshl_add_u32 v58, v56, 6, v58
    s_lshl_b32 s{sT0}, s{sw}, 11
    v_add_u32 v{vB[0]}, s{sT0}, v58
    v_xor_b32 v{vB[1]}, 32, v{vB[0]}
    v_and_b32 v56, 15, v2
    v_lshrrev_b32 v58, 2, v56
    v_and_b32 v59, 3, v56
    v_lshl_add_u32 v1, v57, 3, v58
    v_lshlrev_b32 v1, 8, v1
    v_lshl_add_u32 v1, v59, 3, v1
    v_lshrrev_b32 v3, 4, v2
    v_and_b32 v3, 1, v3
    v_lshl_add_u32 v1, v3, 5, v1
    """)
    for j in range(4):
        a(f"""
        s_add_u32 s{sT1}, s{sw}, {j}
        s_and_b32 s{sT1}, s{sT1}, 3
        v_xor_b32 v3, s{sT1}, v58
        v_lshl_add_u32 v{vA[j]}, v3, 6, v1
        """)
    a(f"v_mov_b32 v{vSum}, 0\nv_mov_b32 v{vSq}, 0\nv_mov_b32 v{vCs}, 0\nv_mov_b32 v{vOnes}, 0x3f803f80")
    for i in range(64): a(f"v_mov_b32 v{ACC+i}, 0")
    for i in range(24): a(f"v_mov_b32 v{GR+i}, 0")
    a(f"""
    v_and_b32 v56, 3, v2
    v_lshrrev_b32 v57, 2, v2
    v_lshrrev_b32 v58, 4, v2
    v_xor_b32 v57, v57, v58
    v_and_b32 v57, 1, v57
    v_or_b32 v56, v56, v57
    v_cmp_eq_u32 vcc, 0, v56
    s_nop 1
    v_cndmask_b32 v{SEL}, 0, v{vOnes}, vcc
    v_cndmask_b32 v{SEL+1}, 0, v{vOnes}, vcc
    v_cndmask_b32 v{SEL+2}, 0, v{vOnes}, vcc
    v_cndmask_b32 v{SEL+3}, 0, v{vOnes}, vcc
    """)
    for j in range(4): a(f"v_add_u32 v{vA4[j]}, 65536, v{vA[j]}")
    for j in range(2): a(f"v_add_u32 v{vB4[j]}, 65536, v{vB[j]}")
    if prefetch in (8, 9):
        for c in range(prefetch - 7, NST): dma(c)
        pf_new()
    def read_list(sig):
        c, s = sig // 2, sig % 2
        stg = c % NST
        st = stg * 16384
        va, vb = vA, vB
        if stg == 4: st -= 65536; va, vb = vA4, vB4
        A = AS[sig % 2]; B = BS[sig % 2]
        L = [f"ds_read_b128 v[{B}:{B+3}], v{vb[s]} offset:{st}"]
        for j in range(4):
            for q in range(2):
                L.append(f"ds_read_b64_tr_b16 v[{A+4*j+2*q}:{A+4*j+2*q+1}], v{va[j]} offset:{st+8192+s*4096+q*1024}")
        return L
    a(f"s_waitcnt vmcnt({4*(NST-1)+NPF0})\ns_barrier")
    mark(a, 3)
    for r in read_list(0): a(r)
    for sig in range(28):
        nxt = sig + 1
        A = AS[sig % 2]; B = BS[sig % 2]
        R = read_list(nxt) if nxt < 28 else []
        D = []
        bar = False
        if nxt < 28 and nxt % 2 == 0:
            c = nxt // 2
            newer = min(13, c + NST - 2) - c
            nx = NEX if (extra_load and c + NST - 2 >= 13 and c - 1 + NST - 1 >= 13 and c > 13 - NST + 1) else 0
            a(f"s_waitcnt vmcnt({4*newer + nx}) lgkmcnt(0)" + ("" if 'b' in XV else "\ns_barrier"))
            bar = True
            if c + NST - 1 < 14: D = dma_parts((c + NST - 1) % NST)
            if c + NST - 1 == 13 and extra_load: D = D + ["EXTRA"]
        Rg = [R[0:3], R[3:6], R[6:9], []]
        EX = "EXTRA" in D
        D = [d for d in D if d != "EXTRA"]
        issued = 0
        for j in range(4):
            if not bar:
                pend_old = 9 - (3 + 2 * j)
                a(f"s_waitcnt lgkmcnt({pend_old + issued})")
            a(f"v_mfma_f32_32x32x16_bf16 v[{ACC+16*j}:{ACC+16*j+15}], v[{A+4*j}:{A+4*j+3}], v[{B}:{B+3}], v[{ACC+16*j}:{ACC+16*j+15}]")
            for r in Rg[j]:
                if 'r' not in XV: a(r)
                issued += 1
            if D: a(D[j][0])
            if j == 0 and not ext: a(f"v_mfma_f32_16x16x32_bf16 v[{SX}:{SX+3}], v[{SEL}:{SEL+3}], v[{B}:{B+3}], v[{SX}:{SX+3}]")
            if j == 1: a(f"v_mfma_f32_16x16x32_bf16 v[{CS}:{CS+3}], v[{SEL}:{SEL+3}], v[{A}:{A+3}], v[{CS}:{CS+3}]")
            if j == 2 and not ext: a(f"v_mfma_f32_32x32x16_bf16 v[{GR}:{GR+15}], v[{B}:{B+3}], v[{B}:{B+3}], v[{GR}:{GR+15}]")
            if (j == 3 or (ext and j != 1)) and D: a("s_nop 0")
            if D: a(D[j][1])
            if j == 3 and EX: extra_load(a)
    mark(a, 4)
    if after_loop: after_loop(a)
    if not ext:
        a(f"""
        s_mov_b32 s52, 0xaaaaaaaa
        s_mov_b32 s53, 0xaaaaaaaa
        s_mov_b32 s54, 0xcccccccc
        s_mov_b32 s55, 0xcccccccc
        s_mov_b32 s56, 0xff00ff00
        s_mov_b32 s57, 0xff00ff00
        s_mov_b32 s58, 0xffff0000
        s_mov_b32 s59, 0xffff0000
        s_nop 7
        s_nop 7
        """)
        for i in range(8): a(f"v_cndmask_b32 v{GR+2*i}, v{GR+2*i}, v{GR+2*i+1}, s[52:53]")
        for i in range(4): a(f"v_cndmask_b32 v{GR+4*i}, v{GR+4*i}, v{GR+4*i+2}, s[54:55]")
        for i in range(2): a(f"v_cndmask_b32 v{GR+8*i}, v{GR+8*i}, v{GR+8*i+4}, s[56:57]")
        a(f"""
        v_cndmask_b32 v{GR}, v{GR}, v{GR+8}, s[58:59]
        s_mov_b32 s52, 0xf0f0f0f0
        v_mov_b32 v56, v{GR}
        s_mov_b32 s53, 0xf0f0f0f0
        v_mov_b32 v{vSum}, v{SX}
        v_mov_b32 v{vCs}, v{CS}
        v_permlane32_swap_b32 v{GR}, v56
        s_nop 1
        v_cndmask_b32 v{vSq}, v{GR}, v56, s[52:53]
        v_and_b32 v56, 31, v2
        v_lshlrev_b32 v56, 2, v56
        s_lshl_b32 s{sT0}, s{sw}, 7
        s_add_u32 s{sT0}, s{sT0}, 65536
        v_add_u32 v56, s{sT0}, v56
        ds_write_b32 v56, v{vCs}
        v_mul_f32 v{vSum}, {f2u(1.0/448)}, v{vSum}
        v_mul_f32 v{vSq}, {f2u(1.0/448)}, v{vSq}
        v_fma_f32 v{vSq}, -v{vSum}, v{vSum}, v{vSq}
        v_max_f32 v{vSq}, 0, v{vSq}
        v_cvt_pk_bf16_f32 v57, v{vSum}, v{vSq}
        v_and_b32 v58, 0xffff0000, v57
        v_lshlrev_b32 v{vSum}, 16, v57
        v_add_f32 v58, {f2u(1e-5)}, v58
        v_cvt_pk_bf16_f32 v58, v58, v58
        v_and_b32 v58, 0xffff0000, v58
        v_sqrt_f32 v58, v58
        s_nop 0
        v_cvt_pk_bf16_f32 v58, v58, v58
        v_and_b32 v{vSq}, 0xffff0000, v58
        v_rcp_f32 v{vCs}, v{vSq}
        s_waitcnt lgkmcnt(0)
        s_barrier
        """)
    else:
        a(f"""
        s_nop 7
        v_and_b32 v56, 31, v2
        v_lshlrev_b32 v56, 2, v56
        s_lshl_b32 s{sT0}, s{sw}, 7
        s_add_u32 s{sT0}, s{sT0}, 65536
        v_add_u32 v56, s{sT0}, v56
        v_lshlrev_b32 v{vSum}, 16, v{ext}
        v_and_b32 v{vSq}, 0xffff0000, v{ext}
        s_nop 4
        ds_write_b32 v56, v{CS}
        v_rcp_f32 v{vCs}, v{vSq}
        s_waitcnt lgkmcnt(0)
        s_barrier
        """)
    vM, vDen, vR = vSum, vSq, vCs
    a(f"v_and_b32 v56, 31, v2\nv_lshlrev_b32 v56, 2, v56")
    for j in range(4):
        a(f"""
        s_add_u32 s{sT1}, s{sw}, {j}
        s_and_b32 s{sT1}, s{sT1}, 3
        s_lshl_b32 s{sT1}, s{sT1}, 7
        s_add_u32 s{sT1}, s{sT1}, 65536
        v_add_u32 v57, s{sT1}, v56
        ds_read_b32 v{16+4*j}, v57
        """)
    if not ext:
        a(f"""
        v_lshrrev_b32 v57, 5, v2
        v_mul_u32_u24 v57, {8*272}, v57
        v_and_b32 v58, 31, v2
        v_lshl_add_u32 v57, v58, 1, v57
        s_lshl_b32 s{sT0}, s{sw}, 6
        v_add_u32 v57, s{sT0}, v57
        """)
        for s in range(2):
            for i in range(4):
                src = BS[s] + i
                a(f"""
                v_lshlrev_b32 v32, 16, v{src}
                v_and_b32 v33, 0xffff0000, v{src}
                v_sub_f32 v32, v32, v{vM}
                v_sub_f32 v33, v33, v{vM}
                v_cvt_pk_bf16_f32 v34, v32, v33
                v_lshlrev_b32 v32, 16, v34
                v_and_b32 v33, 0xffff0000, v34
                v_mul_f32 v32, v32, v{vR}
                v_mul_f32 v33, v33, v{vR}
                v_cvt_pk_bf16_f32 v{36+4*s+i}, v32, v33
                """)
                a(f"ds_write_b16 v57, v{36+4*s+i} offset:{(16*s+2*i)*272}")
                a(f"ds_write_b16_d16_hi v57, v{36+4*s+i} offset:{(16*s+2*i+1)*272}")
    a(f"""
    v_sub_f32 v32, 0, v{vM}
    v_cvt_pk_bf16_f32 v48, v32, v32
    v_lshrrev_b32 v49, 16, v{vDen}
    v_mov_b32 v50, 0
    v_mov_b32 v51, 0
    v_cmp_gt_u32 vcc, 32, v2
    s_nop 1
    v_cndmask_b32 v48, 0, v48, vcc
    v_cndmask_b32 v49, 0, v49, vcc
    s_waitcnt lgkmcnt(16)
    """.replace("lgkmcnt(16)", "lgkmcnt(0)"))
    for j in range(4):
        A = 16 + 4 * j
        a(f"""
        v_cvt_pk_bf16_f32 v32, v{A}, v{A}
        v_lshlrev_b32 v32, 16, v32
        v_sub_f32 v33, v{A}, v32
        v_cvt_pk_bf16_f32 v{A}, v32, v33
        v_mov_b32 v{A+1}, v{vB1+j}
        v_mov_b32 v{A+2}, 0
        v_mov_b32 v{A+3}, 0
        """)
    a("s_nop 1")
    for j in range(4):
        A = 16 + 4 * j
        a(f"v_mfma_f32_32x32x16_bf16 v[{ACC+16*j}:{ACC+16*j+15}], v[{A}:{A+3}], v[48:51], v[{ACC+16*j}:{ACC+16*j+15}]")
    if not ext:
        a(f"""
        s_waitcnt lgkmcnt(0)
        s_barrier
        v_lshrrev_b32 v56, 4, v0
        v_and_b32 v57, 15, v0
        v_mul_u32_u24 v58, 272, v56
        v_lshl_add_u32 v58, v57, 4, v58
        ds_read_b128 v[32:35], v58
        ds_read_b128 v[36:39], v58 offset:{16*272}
        v_lshlrev_b32 v56, 12, v56
        v_lshl_add_u32 v56, v57, 4, v56
        s_lshl_b32 s{sT0}, s{sfs}, 17
        s_lshl_b32 s{sT1}, s{srb}, 8
        s_add_u32 s{sT0}, s{sT0}, s{sT1}
        s_add_u32 s{sT1}, s{sT0}, 65536
        v_mul_f32 v59, {LOG2E}, v{vR}
        v_mul_f32 v3, -2.0, v{vR}
        v_lshlrev_b32 v1, 4, v2
        s_waitcnt lgkmcnt(1)
        buffer_store_dwordx4 v[32:35], v56, s[{sXNT}:{sXNT+3}], s{sT0} offen {coh}
        s_waitcnt lgkmcnt(0)
        buffer_store_dwordx4 v[36:39], v56, s[{sXNT}:{sXNT+3}], s{sT1} offen {coh}
        """)
    else:
        a(f"""
        v_mul_f32 v59, {LOG2E}, v{vR}
        v_mul_f32 v3, -2.0, v{vR}
        v_lshlrev_b32 v1, 4, v2
        s_nop 7
        s_nop 3
        """)
    mark(a, 5)
    a(f"""
    s_lshl_b32 s{sT0}, s{srb}, 2
    s_add_u32 s{sT0}, s{sT0}, s{sw}
    s_mul_i32 s{sT0}, s{sT0}, 112
    s_lshl_b32 s{sT1}, s{sfs}, 3
    s_add_u32 s{sT0}, s{sT0}, s{sT1}
    s_lshl_b32 s33, s{sT0}, 10
    """)
    PK = os.environ.get('PK', '1') == '1'
    if PK:
        a(f"v_mov_b32 v150, v59\nv_mov_b32 v151, v59\nv_mov_b32 v152, v3\nv_mov_b32 v153, v3\nv_mov_b32 v154, v{vR}\nv_mov_b32 v155, v{vR}\ns_mov_b32 s52, 2.0\ns_mov_b32 s53, 2.0")
    Y = 16; T = 24
    for j in range(4):
        if j == mid_j and mid_sig: mid_sig(a, 2 * mid_j)
        a(f"""
        s_add_u32 s{sT1}, s{sw}, {j}
        s_and_b32 s{sT1}, s{sT1}, 3
        s_lshl_b32 s{sT1}, s{sT1}, 11
        s_add_u32 s34, s33, s{sT1}
        """)
        for half in range(2):
            base = ACC + 16 * j + 8 * half
            F = 40 + 4 * half
            if PK:
                for e in range(0, 8, 2): a(f"v_pk_mul_f32 v[{Y+e}:{Y+e+1}], v[{base+e}:{base+e+1}], v[150:151]")
                for e in range(8): a(f"v_exp_f32 v{Y+e}, v{Y+e}")
                for e in range(0, 8, 2): a(f"v_pk_add_f32 v[{T+e}:{T+e+1}], v[{Y+e}:{Y+e+1}], s[52:53]")
                for e in range(0, 8, 2): a(f"v_pk_fma_f32 v[{T+e}:{T+e+1}], v[{Y+e}:{Y+e+1}], v[{T+e}:{T+e+1}], s[52:53]")
                for e in range(8): a(f"v_rcp_f32 v{T+e}, v{T+e}")
                for e in range(0, 8, 2): a(f"v_pk_fma_f32 v[{T+e}:{T+e+1}], v[{T+e}:{T+e+1}], v[152:153], v[154:155]")
                for e in range(0, 8, 2): a(f"v_pk_mul_f32 v[{T+e}:{T+e+1}], v[{base+e}:{base+e+1}], v[{T+e}:{T+e+1}]")
            else:
                for e in range(8): a(f"v_mul_f32 v{Y+e}, v{base+e}, v59")
                for e in range(8): a(f"v_exp_f32 v{Y+e}, v{Y+e}")
                for e in range(8): a(f"v_add_f32 v{T+e}, 2.0, v{Y+e}")
                for e in range(8): a(f"v_fma_f32 v{T+e}, v{Y+e}, v{T+e}, 2.0")
                for e in range(8): a(f"v_rcp_f32 v{T+e}, v{T+e}")
                for e in range(8): a(f"v_fma_f32 v{T+e}, v{T+e}, v3, v{vR}")
                for e in range(8): a(f"v_mul_f32 v{T+e}, v{base+e}, v{T+e}")
            for e in range(4): a(f"v_cvt_pk_bf16_f32 v{F+e}, v{T+2*e}, v{T+2*e+1}")
            if 's' not in XV: a(f"buffer_store_dwordx4 v[{F}:{F+3}], v1, s[{sACT}:{sACT+3}], s34 offen offset:{half*1024} {os.environ.get('ACOH', coh)}")
            if j == 3 and half == 1: mark(a, 6)
    if done: done(a)
```

```python
from asmlib import *
import os
XW = os.environ.get('XW', '')

def emit_g2_setup(a, wg="s2"):
    sw, srb, stb, sdb, sT0, sT1 = 24, 25, 26, 27, 31, 32
    a(f"""
    s_load_dwordx2 s[36:37], s[0:1], {KA['u']}
    s_load_dwordx2 s[38:39], s[0:1], {KA['w2']}
    s_load_dwordx2 s[40:41], s[0:1], {KA['out']}
    s_load_dwordx2 s[42:43], s[0:1], {KA['ws']}
    v_lshrrev_b32 v1, 6, v0
    v_and_b32 v2, 63, v0
    s_and_b32 s{sT0}, {wg}, 7
    s_lshr_b32 s{sT1}, {wg}, 3
    v_readfirstlane_b32 s{sw}, v1
    s_lshl_b32 s{stb}, s{sT0}, 2
    s_and_b32 s{sT0}, s{sT1}, 3
    s_add_u32 s{stb}, s{stb}, s{sT0}
    s_lshr_b32 s{sdb}, s{sT1}, 2
    s_waitcnt lgkmcnt(0)
    """)
    if os.environ.get('BADMAP', '0') == '1':
        a(f"s_mul_i32 s{sT0}, {wg}, 9363\ns_lshr_b32 s{stb}, s{sT0}, 16\ns_mul_i32 s{sT0}, s{stb}, 7\ns_sub_u32 s{sdb}, {wg}, s{sT0}")
    a.srd(4, 36, SZ['u']); a.srd(8, 38, SZ['w2']); a.srd(12, 42, 7340032, WS_ACT); a.srd(16, 42, 1835008, WS_ST); a.srd(20, 40, SZ['out'])

def emit_g2(a, coh="", wait_act=None, wait_st=None, mark=lambda a, i: None, early=None, prog=None):
    sw, stb, sdb, sT0, sT1 = 24, 26, 27, 31, 32
    ACC = 64
    ACT = 128
    AF = [16, 24]
    vWo, vAo, vA0, vA1 = 4, 5, 6, 7
    NS = 8; P = 7
    sAo0, sAo1, sWo, sM = 28, 29, 30, 33
    a(f"""
    v_lshrrev_b32 v8, 3, v2
    v_mul_u32_u24 v{vWo}, 896, v8
    v_lshrrev_b32 v9, 2, v2
    v_and_b32 v9, 1, v9
    v_lshrrev_b32 v10, 4, v2
    v_and_b32 v10, 1, v10
    v_xor_b32 v9, v9, v10
    v_lshl_add_u32 v{vWo}, v9, 6, v{vWo}
    v_and_b32 v9, 3, v2
    v_lshl_add_u32 v{vWo}, v9, 4, v{vWo}
    v_lshlrev_b32 v{vAo}, 4, v2
    s_lshl_b32 s{sT0}, s{stb}, 1
    s_mul_i32 s{sT0}, s{sT0}, 112
    s_mul_i32 s{sT1}, s{sw}, 28
    s_add_u32 s{sT0}, s{sT0}, s{sT1}
    s_lshl_b32 s{sAo0}, s{sT0}, 10
    s_add_u32 s{sAo1}, s{sAo0}, {112*1024}
    s_mul_i32 s{sWo}, s{sT1}, {16*896}
    s_lshl_b32 s{sT0}, s{sdb}, 7
    s_add_u32 s{sWo}, s{sWo}, s{sT0}
    s_lshl_b32 s{sM}, s{sw}, 14
    """)
    a(f"""
    v_and_b32 v8, 15, v2
    v_lshrrev_b32 v9, 2, v8
    v_and_b32 v10, 3, v8
    v_lshrrev_b32 v11, 5, v2
    v_lshl_add_u32 v11, v11, 2, v9
    v_lshlrev_b32 v11, 7, v11
    v_lshl_add_u32 v11, v10, 3, v11
    v_lshrrev_b32 v12, 4, v2
    v_and_b32 v12, 1, v12
    v_lshl_add_u32 v11, v12, 5, v11
    v_lshrrev_b32 v9, 1, v9
    v_lshl_add_u32 v{vA0}, v9, 6, v11
    v_xor_b32 v9, 1, v9
    v_lshl_add_u32 v{vA1}, v9, 6, v11
    v_add_u32 v{vA0}, s{sM}, v{vA0}
    v_add_u32 v{vA1}, s{sM}, v{vA1}
    """)
    def wload(k):
        slot = k % NS
        a(f"""
        s_add_u32 m0, s{sM}, {slot*2048}
        s_add_u32 s{sT0}, s{sWo}, {k*16*896}
        buffer_load_dwordx4 v{vWo}, s[8:11], s{sT0} offen lds
        s_add_u32 m0, s{sM}, {slot*2048+1024}
        s_add_u32 s{sT0}, s{sT0}, {8*896}
        buffer_load_dwordx4 v{vWo}, s[8:11], s{sT0} offen lds
        """)
    def aload(k):
        slot = k % NS
        R = ACT + 8 * slot
        a(f"""
        s_add_u32 s{sT0}, s{sAo0}, {k*1024}
        s_add_u32 s{sT1}, s{sAo1}, {k*1024}
        buffer_load_dwordx4 v[{R}:{R+3}], v{vAo}, s[12:15], s{sT0} offen {coh}
        buffer_load_dwordx4 v[{R+4}:{R+7}], v{vAo}, s[12:15], s{sT1} offen {coh}
        """)
    KP = 13
    E2 = bool(early) and os.environ.get('E2', '1') == '1'
    if E2:
        sF, sN, FCVo, SPINN = early
        a(f"""
        v_and_b32 v9, 31, v2
        v_lshrrev_b32 v10, 5, v2
        v_lshlrev_b32 v11, 14, v10
        v_and_b32 v12, 30, v2
        v_lshl_add_u32 v11, v12, 1, v11
        v_mul_u32_u24 v14, 896, v9
        v_lshl_add_u32 v14, v10, 3, v14
        v_min_u32 v193, 15, v2
        v_lshlrev_b32 v193, 6, v193
        s_lshr_b32 s{sT0}, s{sw}, 1
        s_and_b32 s{sT1}, s{sw}, 1
        s_lshl_b32 s48, s{sdb}, 1
        s_add_u32 s48, s48, s{sT0}
        s_lshl_b32 s49, s{stb}, 1
        s_add_u32 s49, s49, s{sT1}
        s_mul_i32 s50, s49, {32*896}
        s_lshl_b32 s51, s48, 6
        s_add_u32 s50, s50, s51
        s_lshl_b32 s51, s49, 6
        s_lshl_b32 s49, s48, 10
        s_add_u32 s49, s49, {FCVo}
        s_lshl_b32 s48, s48, 17
        s_add_u32 s48, s48, s51
        """)
    elif early:
        sF, sN, FCVo, SPINN = early
        a(f"""
        v_lshrrev_b32 v9, 2, v0
        v_and_b32 v10, 3, v0
        v_lshlrev_b32 v11, 12, v9
        v_lshl_add_u32 v11, v10, 5, v11
        v_lshrrev_b32 v12, 3, v0
        v_and_b32 v13, 7, v0
        v_mul_u32_u24 v14, 896, v12
        v_lshl_add_u32 v14, v13, 4, v14
        v_min_u32 v193, 7, v2
        v_lshlrev_b32 v193, 6, v193
        s_lshl_b32 s{sT0}, s{sdb}, 18
        s_lshl_b32 s{sT1}, s{stb}, 7
        s_add_u32 s48, s{sT0}, s{sT1}
        s_mul_i32 s{sT0}, s{stb}, {64*896}
        s_lshl_b32 s{sT1}, s{sdb}, 7
        s_add_u32 s50, s{sT0}, s{sT1}
        s_add_u32 s51, s50, {32*896}
        s_lshl_b32 s{sT0}, s{sdb}, 11
        s_lshl_b32 s{sT1}, s{sw}, 9
        s_add_u32 s49, s{sT0}, s{sT1}
        s_add_u32 s49, s49, {FCVo}
        """)
    for k in range(P): wload(k)
    for i in range(64): a(f"v_mov_b32 v{ACC+i}, 0")
    if wait_act: wait_act(a)
    for k in range(P): aload(k)
    APF = 0
    if os.environ.get('APF', '1') == '1':
        a(f"""
        s_lshl_b32 s{sT0}, s{stb}, 1
        s_mul_i32 s{sT0}, s{sT0}, {112*1024}
        s_lshl_b32 s{sT1}, s{sdb}, 15
        s_add_u32 s{sT0}, s{sT0}, s{sT1}
        v_lshlrev_b32 v9, 7, v0
        buffer_load_dword v194, v9, s[12:15], s{sT0} offen {coh}
        """)
        APF = 1
    def reads(k):
        slot = k % NS; F = AF[k % 2]
        for dt, va in ((0, vA0), (1, vA1)):
            for q in range(2):
                a(f"ds_read_b64_tr_b16 v[{F+4*dt+2*q}:{F+4*dt+2*q+1}], v{va} offset:{slot*2048+q*1024}")
    def outstanding_after(k):
        if k < P: return 2 * (P - 1 - k) + 4 * min(k, 28 - P)
        return 4 * (min(k + P, 28) - 1 - k)
    a(f"s_waitcnt vmcnt({outstanding_after(0) + APF})")
    mark(a, 3)
    reads(0)
    def read_list(k):
        slot = k % NS; F = AF[k % 2]
        return [f"ds_read_b64_tr_b16 v[{F+4*dt+2*q}:{F+4*dt+2*q+1}], v{va} offset:{slot*2048+q*1024}" for dt, va in ((0, vA0), (1, vA1)) for q in range(2)]
    a(f"s_add_u32 s52, s{sWo}, {P*16*896}\ns_add_u32 s53, s{sAo0}, {P*1024}\ns_add_u32 s54, s{sAo1}, {P*1024}\nv_add_u32 v15, {8*896}, v{vWo}")
    for k in range(28):
        R1 = []
        if k + 1 < 28:
            if k + 1 < P:
                n = 2 * (P - 1 - (k + 1)) + 4 * min(k, 28 - P) + APF
            else:
                n = 4 * (min(k - 1 + P, 27) - (k + 1))
            if early:
                if k > KP and k + 1 <= KP + P: n += 1
                if k > 27 - P: n += (20 if E2 else 4)
            if prog:
                if 1 <= k <= 6 or 9 <= k <= 14: n += 1
                if k in (5, 13): n = min(n, 16)
            a(f"s_waitcnt vmcnt({n}) lgkmcnt(2)")
            if prog and k in (5, 13):
                sFp, sNp, sBp, SPp = prog
                reg, msk = (218, 4) if k == 5 else (219, 8)
                lab = a.label("pg")
                a(f"""
                v_cmp_ne_u32 vcc, s{sNp}, v{reg}
                s_and_b32 s55, vcc_lo, {msk}
                s_cbranch_scc0 {lab}_d
                s_mov_b32 s61, {SPp}
                {lab}:
                buffer_load_dword v{reg}, v216, s[{sFp}:{sFp+3}], {sBp} offen sc1
                s_sub_u32 s61, s61, 1
                s_cbranch_scc1 {lab}_d
                s_waitcnt vmcnt(0)
                v_cmp_ne_u32 vcc, s{sNp}, v{reg}
                s_and_b32 s55, vcc_lo, {msk}
                s_cbranch_scc1 {lab}
                {lab}_d:
                """)
            R1 = read_list(k + 1)
        else:
            a("s_waitcnt lgkmcnt(2)")
        pf = k + P < 28
        pfw = pf and 'w' not in XW; pfa = pf and 'a' not in XW
        if 'r' in XW: R1 = ["s_nop 0"] * len(R1)
        slot = (k + P) % NS
        RA = ACT + 8 * slot
        F = AF[k % 2]; R = ACT + 8 * (k % NS)
        def mf(dt, tt):
            D = ACC + 16 * (2 * dt + tt)
            a(f"v_mfma_f32_32x32x16_bf16 v[{D}:{D+15}], v[{F+4*dt}:{F+4*dt+3}], v[{R+4*tt}:{R+4*tt+3}], v[{D}:{D+15}]")
        mf(0, 0)
        if pfw: a(f"s_add_u32 m0, s{sM}, {slot*2048}")
        for r in R1[0:2]: a(r)
        if pfw: a(f"buffer_load_dwordx4 v{vWo}, s[8:11], s52 offen lds")
        mf(0, 1)
        if pfw: a(f"s_add_u32 m0, s{sM}, {slot*2048+1024}")
        for r in R1[2:4]: a(r)
        if pfw: a(f"buffer_load_dwordx4 v15, s[8:11], s52 offen lds\ns_add_u32 s52, s52, {16*896}")
        a(f"s_waitcnt lgkmcnt({len(R1)})")
        mf(1, 0)
        if pfa: a(f"buffer_load_dwordx4 v[{RA}:{RA+3}], v{vAo}, s[12:15], s53 offen {coh}\ns_add_u32 s53, s53, 1024")
        mf(1, 1)
        if pfa: a(f"buffer_load_dwordx4 v[{RA+4}:{RA+7}], v{vAo}, s[12:15], s54 offen {coh}\ns_add_u32 s54, s54, 1024")
        if prog and k in (0, 8):
            a(f"buffer_load_dword v{218 if k == 0 else 219}, v216, s[{prog[0]}:{prog[0]+3}], {prog[2]} offen sc1")
        if early and k == KP:
            a(f"buffer_load_dword v192, v193, s[{sF}:{sF+3}], s49 offen sc1")
        if early and k == 27 - P:
            lab = a.label("es")
            mark(a, 5)
            a(f"""
            v_cmp_ne_u32 vcc, s{sN}, v192
            s_cbranch_vccz {lab}_d
            s_mov_b32 s61, {SPINN}
            {lab}:
            buffer_load_dword v192, v193, s[{sF}:{sF+3}], s49 offen sc1
            s_sub_u32 s61, s61, 1
            s_cbranch_scc1 {lab}_d
            s_waitcnt vmcnt(0)
            v_cmp_ne_u32 vcc, s{sN}, v192
            s_cbranch_vccnz {lab}
            {lab}_d:
            """)
            mark(a, 6)
            if E2:
                for r in range(16):
                    row = 8 * (r // 4) + r % 4
                    a(f"s_add_u32 s51, s48, {row*4096}\nbuffer_load_dword v{196+r}, v11, s[16:19], s51 offen {coh}")
                for g in range(4):
                    a(f"buffer_load_dwordx2 v[{212+2*g}:{213+2*g}], v14, s[4:7], s50 offen offset:{16*g}")
            else:
                a(f"""
                buffer_load_dwordx4 v[196:199], v11, s[16:19], s48 offen {coh}
                buffer_load_dwordx4 v[200:203], v11, s[16:19], s48 offen offset:16 {coh}
                buffer_load_dwordx4 v[204:207], v14, s[4:7], s50 offen
                buffer_load_dwordx4 v[208:211], v14, s[4:7], s51 offen
                """)
    mark(a, 4)
    if E2:
        T = 16
        a(f"""
        v_lshlrev_b32 v8, 4, v2
        v_add_u32 v9, s{sM}, v8
        s_lshl_b32 s{sT0}, s{sw}, 12
        v_add_u32 v8, s{sT0}, v8
        s_mov_b32 s52, {f2u(-1.4426950408889634)}
        s_mov_b32 s53, {f2u(-1.4426950408889634)}
        s_mov_b32 s54, 1.0
        s_mov_b32 s55, 1.0
        v_and_b32 v10, 1, v2
        v_lshlrev_b32 v10, 4, v10
        v_sub_u32 v10, 16, v10
        s_nop 7
        """)
        for q in range(4):
            l1 = a.label("qx"); l2 = a.label("qy")
            a(f"s_cmp_eq_u32 s{sw}, {q}\ns_cbranch_scc1 {l1}")
            for j in range(4): a(f"ds_write_b128 v9, v[{ACC+16*q+4*j}:{ACC+16*q+4*j+3}] offset:{q*4096+j*1024}")
            a(f"s_branch {l2}\n{l1}:")
            for i in range(16): a(f"v_mov_b32 v{T+i}, v{ACC+16*q+i}")
            a(f"{l2}:")
        for i in range(1, 4):
            a(f"s_add_u32 s{sT0}, s{sw}, {i}\ns_and_b32 s{sT0}, s{sT0}, 3\ns_lshl_b32 s{sT0}, s{sT0}, 14\nv_add_u32 v{4+i}, s{sT0}, v8")
        a("s_waitcnt lgkmcnt(0)\ns_barrier")
        mark(a, 7)
        for i in range(1, 4):
            for j in range(4): a(f"ds_read_b128 v[{64+16*(i-1)+4*j}:{64+16*(i-1)+4*j+3}], v{4+i} offset:{j*1024}")
        a("s_waitcnt vmcnt(0)")
        for r in range(16): a(f"v_lshlrev_b32 v{196+r}, v10, v{196+r}")
        for r in range(16): a(f"v_and_b32 v{196+r}, 0xffff0000, v{196+r}")
        a("s_waitcnt lgkmcnt(8)")
        for i in range(0, 16, 2): a(f"v_pk_add_f32 v[{T+i}:{T+i+1}], v[{T+i}:{T+i+1}], v[{64+i}:{64+i+1}]")
        a("s_waitcnt lgkmcnt(0)")
        for i in range(0, 16, 2): a(f"v_pk_add_f32 v[{80+i}:{80+i+1}], v[{80+i}:{80+i+1}], v[{96+i}:{96+i+1}]")
        for i in range(0, 16, 2): a(f"v_pk_add_f32 v[{T+i}:{T+i+1}], v[{T+i}:{T+i+1}], v[{80+i}:{80+i+1}]")
        Y = 64
        mark(a, 8)
        for i in range(0, 16, 2): a(f"v_cvt_pk_bf16_f32 v{Y+i}, v{T+i}, v{T+i+1}")
        for i in range(0, 16, 2): a(f"v_lshlrev_b32 v{T+i}, 16, v{Y+i}\nv_and_b32 v{T+i+1}, 0xffff0000, v{Y+i}")
        for i in range(0, 16, 2): a(f"v_pk_mul_f32 v[{Y+i}:{Y+i+1}], v[{T+i}:{T+i+1}], s[52:53]")
        for i in range(16): a(f"v_exp_f32 v{Y+i}, v{Y+i}")
        for i in range(0, 16, 2): a(f"v_pk_add_f32 v[{Y+i}:{Y+i+1}], v[{Y+i}:{Y+i+1}], s[54:55]")
        for i in range(16): a(f"v_rcp_f32 v{Y+i}, v{Y+i}")
        for i in range(0, 16, 2): a(f"v_pk_mul_f32 v[{T+i}:{T+i+1}], v[{T+i}:{T+i+1}], v[{Y+i}:{Y+i+1}]")
        for i in range(0, 16, 2): a(f"v_cvt_pk_bf16_f32 v{Y+i}, v{T+i}, v{T+i+1}")
        for i in range(0, 16, 2): a(f"v_lshlrev_b32 v{T+i}, 16, v{Y+i}\nv_and_b32 v{T+i+1}, 0xffff0000, v{Y+i}")
        for i in range(0, 16, 2): a(f"v_pk_mul_f32 v[{T+i}:{T+i+1}], v[{T+i}:{T+i+1}], v[{196+i}:{197+i}]")
        for i in range(0, 16, 2): a(f"v_cvt_pk_bf16_f32 v{Y+i}, v{T+i}, v{T+i+1}")
        for i in range(0, 16, 2): a(f"v_lshlrev_b32 v{T+i}, 16, v{Y+i}\nv_and_b32 v{T+i+1}, 0xffff0000, v{Y+i}")
        for i in range(0, 16, 2):
            X = 212 + i // 2
            a(f"v_lshlrev_b32 v{Y+i}, 16, v{X}\nv_and_b32 v{Y+i+1}, 0xffff0000, v{X}")
        for i in range(0, 16, 2): a(f"v_pk_add_f32 v[{T+i}:{T+i+1}], v[{T+i}:{T+i+1}], v[{Y+i}:{Y+i+1}]")
        mark(a, 9)
        for g in range(4):
            a(f"v_cvt_pk_bf16_f32 v{Y+2*g}, v{T+4*g}, v{T+4*g+1}\nv_cvt_pk_bf16_f32 v{Y+2*g+1}, v{T+4*g+2}, v{T+4*g+3}")
            a(f"buffer_store_dwordx2 v[{Y+2*g}:{Y+2*g+1}], v14, s[20:23], s50 offen offset:{16*g}")
        return
    a("s_nop 15\ns_barrier")
    a(f"""
    v_and_b32 v8, 31, v2
    v_lshrrev_b32 v9, 5, v2
    v_mul_u32_u24 v8, 272, v8
    v_lshl_add_u32 v8, v9, 4, v8
    s_mul_i32 s{sT0}, s{sw}, 17408
    v_add_u32 v8, s{sT0}, v8
    """)
    for dt in range(2):
        for tt in range(2):
            D = ACC + 16 * (2 * dt + tt)
            for j in range(4):
                a(f"ds_write_b128 v8, v[{D+4*j}:{D+4*j+3}] offset:{tt*32*272 + dt*128 + j*32}")
    if wait_st: wait_st(a)
    LST = 69632
    if not early:
        a(f"""
        v_lshrrev_b32 v9, 2, v0
        v_and_b32 v10, 3, v0
        v_lshlrev_b32 v11, 12, v9
        v_lshl_add_u32 v11, v10, 5, v11
        s_lshl_b32 s{sT0}, s{sdb}, 18
        s_lshl_b32 s{sT1}, s{stb}, 7
        s_add_u32 s{sT0}, s{sT0}, s{sT1}
        buffer_load_dwordx4 v[16:19], v11, s[16:19], s{sT0} offen {coh}
        buffer_load_dwordx4 v[20:23], v11, s[16:19], s{sT0} offen offset:16 {coh}
        v_lshrrev_b32 v12, 3, v0
        v_and_b32 v13, 7, v0
        v_mul_u32_u24 v14, 896, v12
        v_lshl_add_u32 v14, v13, 4, v14
        s_mul_i32 s{sT0}, s{stb}, {64*896}
        s_lshl_b32 s{sT1}, s{sdb}, 7
        s_add_u32 s34, s{sT0}, s{sT1}
        s_add_u32 s35, s34, {32*896}
        buffer_load_dwordx4 v[24:27], v14, s[4:7], s34 offen
        buffer_load_dwordx4 v[28:31], v14, s[4:7], s35 offen
        v_mul_u32_u24 v9, 144, v9
        v_lshl_add_u32 v9, v10, 5, v9
        v_add_u32 v9, {LST}, v9
        s_waitcnt vmcnt(2)
        ds_write_b128 v9, v[16:19]
        ds_write_b128 v9, v[20:23] offset:16
        s_waitcnt lgkmcnt(0)
        s_barrier
        """)
    else:
        a(f"""
        s_mov_b32 s34, s50
        s_mov_b32 s35, s51
        v_lshrrev_b32 v9, 2, v0
        v_and_b32 v10, 3, v0
        v_mul_u32_u24 v9, 144, v9
        v_lshl_add_u32 v9, v10, 5, v9
        v_add_u32 v9, {LST}, v9
        s_waitcnt vmcnt(2)
        ds_write_b128 v9, v[196:199]
        ds_write_b128 v9, v[200:203] offset:16
        s_waitcnt lgkmcnt(0)
        s_barrier
        """)
    a(f"""
    v_mul_u32_u24 v9, 272, v12
    v_lshl_add_u32 v9, v13, 5, v9
    v_mul_u32_u24 v10, {8*144}, v13
    v_lshl_add_u32 v10, v12, 1, v10
    v_add_u32 v10, {LST}, v10
    """)
    for p in range(2):
        G = 64
        for w in range(4):
            a(f"ds_read_b128 v[{G+8*w}:{G+8*w+3}], v9 offset:{w*17408 + p*32*272}")
            a(f"ds_read_b128 v[{G+8*w+4}:{G+8*w+7}], v9 offset:{w*17408 + p*32*272 + 16}")
        for e in range(8):
            a(f"ds_read_u16 v{96+e}, v10 offset:{e*144 + p*64}")
        a("s_waitcnt lgkmcnt(0)")
        for e in range(8):
            a(f"v_add_f32 v{G+e}, v{G+e}, v{G+8+e}\nv_add_f32 v{G+16+e}, v{G+16+e}, v{G+24+e}")
        for e in range(8):
            a(f"v_add_f32 v{G+e}, v{G+e}, v{G+16+e}")
        for e in range(0, 8, 2):
            a(f"v_cvt_pk_bf16_f32 v{72+e}, v{G+e}, v{G+e+1}")
            a(f"v_lshlrev_b32 v{G+e}, 16, v{72+e}\nv_and_b32 v{G+e+1}, 0xffff0000, v{72+e}")
        for e in range(8): a(f"v_mul_f32 v{72+e}, {f2u(-1.4426950408889634)}, v{G+e}")
        for e in range(8): a(f"v_exp_f32 v{72+e}, v{72+e}")
        for e in range(8): a(f"v_add_f32 v{72+e}, 1.0, v{72+e}")
        for e in range(8): a(f"v_rcp_f32 v{72+e}, v{72+e}")
        for e in range(8): a(f"v_mul_f32 v{G+e}, v{G+e}, v{72+e}")
        for e in range(0, 8, 2):
            a(f"v_cvt_pk_bf16_f32 v{72+e}, v{G+e}, v{G+e+1}")
            a(f"v_lshlrev_b32 v{G+e}, 16, v{72+e}\nv_and_b32 v{G+e+1}, 0xffff0000, v{72+e}")
        for e in range(8): a(f"v_lshlrev_b32 v{96+e}, 16, v{96+e}\nv_mul_f32 v{G+e}, v{G+e}, v{96+e}")
        if p == 0: a("s_waitcnt vmcnt(0)" if early else "s_waitcnt vmcnt(1)")
        elif not early: a("s_waitcnt vmcnt(1)")
        X = (204 if early else 24) + 4 * p
        for e in range(0, 8, 2):
            a(f"v_cvt_pk_bf16_f32 v{72+e}, v{G+e}, v{G+e+1}")
            a(f"v_lshlrev_b32 v{G+e}, 16, v{72+e}\nv_and_b32 v{G+e+1}, 0xffff0000, v{72+e}")
            a(f"v_lshlrev_b32 v{80+e}, 16, v{X+e//2}\nv_and_b32 v{81+e}, 0xffff0000, v{X+e//2}")
            a(f"v_add_f32 v{G+e}, v{G+e}, v{80+e}\nv_add_f32 v{G+e+1}, v{G+e+1}, v{81+e}")
            a(f"v_cvt_pk_bf16_f32 v{104+4*p+e//2}, v{G+e}, v{G+e+1}")
        a(f"buffer_store_dwordx4 v[{104+4*p}:{107+4*p}], v14, s[20:23], s{34+p} offen")
```

```python
from asmlib import *
FG1 = 0; FXN = 0x4000; FCV = 0x8000
SPIN = 20000
def nonce_make(a):
    lab = a.label("nm")
    a(f"""
    s_cmp_lg_u32 s2, 0
    s_cbranch_scc1 {lab}
    s_load_dwordx2 s[62:63], s[0:1], {KA['dbg']}
    s_memrealtime s[60:61]
    s_waitcnt lgkmcnt(0)
    s_or_b32 s60, s60, 1
    v_mov_b32 v1, s60
    v_mov_b32 v2, 0
    v_cmp_eq_u32 vcc, 0, v0
    s_and_saveexec_b64 s[60:61], vcc
    s_cbranch_execz {lab}_r
    global_store_dword v2, v1, s[62:63] sc1
    {lab}_r:
    s_mov_b64 exec, s[60:61]
    {lab}:
    """)
def flag_srd(a, s):
    a(f"s_load_dwordx2 s[62:63], s[0:1], {KA['ws']}\ns_waitcnt lgkmcnt(0)")
    a.srd(s, 62, 0x10000, WS_FLAG)
def nonce_get(a, sN, vt):
    lab = a.label("ng")
    a(f"""
    s_load_dwordx2 s[62:63], s[0:1], {KA['dbg']}
    v_mov_b32 v{vt}, 0
    s_mov_b32 s61, {SPIN}
    s_waitcnt lgkmcnt(0)
    {lab}:
    global_load_dword v{vt+1}, v{vt}, s[62:63] sc1
    s_waitcnt vmcnt(0)
    v_readfirstlane_b32 s{sN}, v{vt+1}
    s_sub_u32 s61, s61, 1
    s_cbranch_scc1 {lab}_d
    s_cmp_eq_u32 s{sN}, 0
    s_cbranch_scc1 {lab}
    {lab}_d:
    """)
def signal(a, sF, sOffExpr, sN, vt):
    lab = a.label("sg")
    a(f"""
    s_waitcnt vmcnt(0)
    s_barrier
    v_cmp_eq_u32 vcc, 0, v0
    s_and_saveexec_b64 s[60:61], vcc
    s_cbranch_execz {lab}
    v_mov_b32 v{vt}, s{sN}
    v_mov_b32 v{vt+1}, 0
    buffer_store_dword v{vt}, v{vt+1}, s[{sF}:{sF+3}], {sOffExpr} offen sc1
    {lab}:
    s_mov_b64 exec, s[60:61]
    """)
def wait_flags(a, sF, sBase, n, stride, sN, sw, vt):
    lab = a.label("wf")
    a(f"""
    s_cmp_lg_u32 s{sw}, 0
    s_cbranch_scc1 {lab}_d
    v_min_u32 v{vt}, {n-1}, v2
    v_mul_u32_u24 v{vt}, {stride}, v{vt}
    s_mov_b32 s61, {SPIN}
    {lab}:
    buffer_load_dword v{vt+1}, v{vt}, s[{sF}:{sF+3}], {sBase} offen sc1
    s_sub_u32 s61, s61, 1
    s_cbranch_scc1 {lab}_d
    s_waitcnt vmcnt(0)
    v_cmp_ne_u32 vcc, s{sN}, v{vt+1}
    s_cbranch_vccnz {lab}
    {lab}_d:
    s_barrier
    """)

def nonce_issue(a, vN, sP=62):
    a(f"v_mov_b32 v{vN+1}, 0\nglobal_load_dword v{vN}, v{vN+1}, s[{sP}:{sP+1}] sc1")
def nonce_finish(a, sN, vN, sP=62, vm=0):
    lab = a.label("nf")
    a(f"""
    s_waitcnt vmcnt({vm})
    v_readfirstlane_b32 s{sN}, v{vN}
    s_mov_b32 s61, {SPIN}
    s_nop 1
    s_cmp_lg_u32 s{sN}, 0
    s_cbranch_scc1 {lab}_d
    {lab}:
    global_load_dword v{vN}, v{vN+1}, s[{sP}:{sP+1}] sc1
    s_waitcnt vmcnt(0)
    v_readfirstlane_b32 s{sN}, v{vN}
    s_sub_u32 s61, s61, 1
    s_cbranch_scc1 {lab}_d
    s_cmp_eq_u32 s{sN}, 0
    s_cbranch_scc1 {lab}
    {lab}_d:
    """)
def signal_n(a, sF, sOffExpr, sN, vt, nvm):
    lab = a.label("sg")
    a(f"""
    s_waitcnt vmcnt({nvm})
    s_barrier
    v_cmp_eq_u32 vcc, 0, v0
    s_and_saveexec_b64 s[60:61], vcc
    s_cbranch_execz {lab}
    v_mov_b32 v{vt}, s{sN}
    v_mov_b32 v{vt+1}, 0
    buffer_store_dword v{vt}, v{vt+1}, s[{sF}:{sF+3}], {sOffExpr} offen sc1
    {lab}:
    s_mov_b64 exec, s[60:61]
    """)

def wait_flags_pipe(a, sF, sBase, n, stride, sN, sw, vt):
    lab = a.label("wp")
    ld = lambda i: f"buffer_load_dword v{vt+1+i}, v{vt}, s[{sF}:{sF+3}], {sBase} offen sc1"
    a(f"""
    s_cmp_lg_u32 s{sw}, 0
    s_cbranch_scc1 {lab}_d
    v_min_u32 v{vt}, {n-1}, v2
    v_mul_u32_u24 v{vt}, {stride}, v{vt}
    s_mov_b32 s61, {SPIN}
    {ld(0)}
    {ld(1)}
    {ld(2)}
    {lab}:
    """)
    for i in range(3):
        a(f"""
        s_waitcnt vmcnt(2)
        v_cmp_ne_u32 vcc, s{sN}, v{vt+1+i}
        s_cbranch_vccz {lab}_d
        {ld(i)}
        """)
    a(f"""
    s_sub_u32 s61, s61, 1
    s_cbranch_scc0 {lab}
    {lab}_d:
    s_barrier
    """)
```

```python
import sys, os
from asmlib import *
from role_g1 import emit_g1
from role_kc import *
from role_g2 import *
from role_ln import *
from sync import *
ST = len(sys.argv) > 2 and sys.argv[2] == "1"
E = lambda k, d: int(os.environ.get(k, d))
TCH = E('TCH', 0); G2M = E('G2M', 0); PF = E('PF', 0); PA = E('PA', 3); PA2 = E('PA2', PA); PA3 = E('PA3', PA2); PB = E('PB', 0); PB2 = E('PB2', PB); PC = E('PC', 3)
MK = stamp_mark if ST else (lambda a, i: None)
K = NAME + "_kernel"
hdr = open("cdna_kernels/" + NAME + ".s.ref").read().split("; Override")[0]
a = Asm()
NC, NB, NA = 64, 224, 224
a(f"; @launch grid=({NC+NB+NA},1,1) block=(256,1,1) lds=81920")
a('.amdgcn_target "amdgcn-amd-amdhsa--gfx950"\n.text')
a(kernel_header(K))
a(f"s_cmp_ge_u32 s2, {NC+NB+NA}\ns_cbranch_scc1 L_end")
if ST: stamp_begin(a)
a(f"s_cmp_ge_u32 s2, {NC+NB}\ns_cbranch_scc1 L_typeA")
a(f"s_cmp_ge_u32 s2, {NC}\ns_cbranch_scc1 L_typeB")
SN = 69; SF = 44
nonce_make(a)
if PC: a(f"s_setprio {PC}")
emit_ln(a, SF, SN, mark=MK)
MK(a, 6)
a("s_branch L_fin")
a(f"L_typeB:\ns_sub_u32 s2, s2, {NC}")
if PB: a(f"s_setprio {PB}")
a(f"s_load_dwordx2 s[62:63], s[0:1], {KA['dbg']}")
def xl(a):
    a.srd(SF, 42, 0x10000, WS_FLAG)
    nonce_issue(a, 130)
    a(f"""
    v_and_b32 v141, 31, v2
    v_lshlrev_b32 v141, 3, v141
    s_lshl_b32 s51, s25, 10
    s_lshl_b32 s52, s24, 8
    s_add_u32 s51, s51, s52
    s_add_u32 s51, s51, {FSTAT}
    buffer_load_dwordx2 v[142:143], v141, s[{SF}:{SF+3}], s51 offen sc1
    """)
    if TCH:
        a(f"""
        s_lshl_b32 s53, s25, 2
        s_add_u32 s53, s53, s24
        s_mul_i32 s53, s53, 112
        s_lshl_b32 s54, s26, 3
        s_add_u32 s53, s53, s54
        s_lshl_b32 s53, s53, 10
        v_lshlrev_b32 v144, 7, v2
        buffer_load_dword v145, v144, s[12:15], s53 offen sc1
        """)
def fin(a):
    nonce_finish(a, SN, 130, vm=TCH)
    lab = a.label("gr")
    a(f"""
    v_cmp_ne_u32 vcc, s{SN}, v142
    s_cbranch_vccz {lab}_d
    s_mov_b32 s61, {SPIN}
    {lab}:
    buffer_load_dwordx2 v[142:143], v141, s[{SF}:{SF+3}], s51 offen sc1
    s_sub_u32 s61, s61, 1
    s_cbranch_scc1 {lab}_d
    s_waitcnt vmcnt(0)
    v_cmp_ne_u32 vcc, s{SN}, v142
    s_cbranch_vccnz {lab}
    {lab}_d:
    """)
emit_g1(a, coh="sc1", mark=MK, extra_load=xl, after_loop=fin, prefetch=PF, ext=143)
MK(a, 6)
PROG = E('PROG', 1); EARLYSET = E('EARLYSET', 0); PIPE = E('PIPE', 1)
a("s_lshl_b32 s68, s25, 10\ns_lshl_b32 s34, s26, 6\ns_add_u32 s68, s68, s34")
if not EARLYSET:
    signal(a, SF, "s68", SN, 16)
    MK(a, 7)
    if PB2 != PB: a(f"s_setprio {PB2}")
emit_g2_setup(a)
def wact(a):
    if EARLYSET:
        signal(a, SF, "s68", SN, 16)
        MK(a, 7)
        if PB2 != PB: a(f"s_setprio {PB2}")
    a("s_lshr_b32 s34, s26, 1\ns_lshl_b32 s34, s34, 10")
    if PROG:
        lab = a.label("pw")
        a(f"""
        s_mul_i32 s35, s24, 28
        s_lshr_b32 s35, s35, 3
        s_lshl_b32 s35, s35, 6
        s_add_u32 s56, s34, s35
        v_min_u32 v216, 3, v2
        v_lshlrev_b32 v216, 6, v216
        s_mov_b32 s61, {SPIN}
        {lab}:
        buffer_load_dword v217, v216, s[{SF}:{SF+3}], s56 offen sc1
        s_sub_u32 s61, s61, 1
        s_cbranch_scc1 {lab}_d
        s_waitcnt vmcnt(0)
        v_cmp_ne_u32 vcc, s{SN}, v217
        s_and_b32 s55, vcc_lo, 3
        s_cbranch_scc1 {lab}
        {lab}_d:
        """)
    elif PIPE: wait_flags_pipe(a, SF, "s34", 14, 64, SN, 24, 216)
    else: wait_flags(a, SF, "s34", 14, 64, SN, 24, 8)
    MK(a, 8)
emit_g2(a, coh="sc1", wait_act=wact, wait_st=None, mark=lambda a, i: (MK(a, {3: 1, 4: 2, 5: 3, 6: 5, 7: 4, 8: 6, 9: 7}[i]) if (i < 5 or G2M) else None), early=(SF, SN, FCV, SPIN), prog=((SF, SN, 's56', SPIN) if PROG else None))
a(f"s_add_u32 s2, s2, {NC}")
a("s_branch L_fin")
a(f"L_typeA:\ns_sub_u32 s2, s2, {NC+NB}")
if PA: a(f"s_setprio {PA}")
emit_kg_setup(a)
a.srd(32, 48, 1835008, WS_ST); a.srd(56, 48, 1835008, WS_XNT)
emit_xs_zero(a)
MK(a, 3)
emit_kg_channel(a, 0, hook1=((lambda a: a(f's_setprio {PA2}')) if E('PAX', 0) == 1 else None))
MK(a, 4)
if PA2 != PA: a(f"s_setprio {PA2}")
flag_srd(a, SF)
a(f"s_load_dwordx2 s[62:63], s[0:1], {KA['dbg']}\ns_waitcnt vmcnt(0) lgkmcnt(0)")
nonce_issue(a, 200)
def hk1(a):
    a(f"v_lshlrev_b32 v205, 6, v2\ns_mov_b32 s54, {FXN}\nbuffer_load_dword v204, v205, s[{SF}:{SF+3}], s54 offen sc1")
def hk2(a):
    nonce_finish(a, SN, 200)
    lab = a.label("xw")
    a(f"""
    v_cmp_ne_u32 vcc, s{SN}, v204
    s_cbranch_vccz {lab}_d
    s_mov_b32 s61, {SPIN}
    {lab}:
    buffer_load_dword v204, v205, s[{SF}:{SF+3}], s54 offen sc1
    s_sub_u32 s61, s61, 1
    s_cbranch_scc1 {lab}_d
    s_waitcnt vmcnt(0)
    v_cmp_ne_u32 vcc, s{SN}, v204
    s_cbranch_vccnz {lab}
    {lab}_d:
    """)
    emit_xs_issue(a, 208, coh="sc1")
if E('PAY', -1) >= 0: hk1_ = hk1; hk1 = lambda a: (hk1_(a), a(f"s_setprio {E('PAY', -1)}"))
emit_kg_channel(a, 1, wait=False, hook1=hk1, hook2=hk2)
MK(a, 5)
if PA3 != PA2: a(f"s_setprio {PA3}")
emit_xs_write(a, 208)
MK(a, 6)
a(f"""
s_cmp_eq_u32 s24, 0
s_cbranch_scc1 L_nopf
s_load_dwordx2 s[62:63], s[0:1], {KA['w2']}
s_lshr_b32 s54, s25, 3
s_mul_i32 s54, s54, {448*128}
v_subrev_u32 v202, 64, v0
v_lshlrev_b32 v202, 7, v202
s_waitcnt lgkmcnt(0)
""")
a.srd(64, 62, SZ['w2'])
a(f"""
s_add_u32 s55, s54, {192*128}
buffer_load_dword v203, v202, s[64:67], s54 offen
buffer_load_dword v203, v202, s[64:67], s55 offen
s_add_u32 s55, s54, {384*128}
v_cmp_gt_u32 vcc, {64+64}, v0
s_and_saveexec_b64 s[60:61], vcc
s_cbranch_execz L_nopf2
buffer_load_dword v203, v202, s[64:67], s55 offen
L_nopf2:
s_mov_b64 exec, s[60:61]
L_nopf:
""")
a("s_waitcnt lgkmcnt(0)\ns_barrier")
MK(a, 7)
emit_cv(a, coh="sc1")
MK(a, 8)
a(f"s_lshl_b32 s54, s25, 6\ns_add_u32 s54, s54, {FCV}")
signal(a, SF, "s54", SN, 88)
a(f"s_add_u32 s2, s2, {NC+NB}")
a("L_fin:")
if ST: stamp_end(a, 0)
a("L_end:\ns_endpgm")
a('.section .rodata,"a"')
a(kernel_desc(K, 256 if ST else 224))
open(sys.argv[1], "w").write(hdr + a.text())
```

```python
import sys, os
from asmlib import *
from role_g1 import emit_g1
from role_kc import *
from role_g2 import *
from role_ln import *
from sync import *
ST = len(sys.argv) > 2 and sys.argv[2] == "1"
E = lambda k, d: int(os.environ.get(k, d))
TCH = E('TCH', 0); G2M = E('G2M', 0); PF = E('PF', 0); PA = E('PA', 3); PA2 = E('PA2', PA); PA3 = E('PA3', PA2); PB = E('PB', 0); PB2 = E('PB2', PB); PC = E('PC', 3)
MK = stamp_mark if ST else (lambda a, i: None)
K = NAME + "_kernel"
hdr = open("cdna_kernels/" + NAME + ".s.ref").read().split("; Override")[0]
a = Asm()
NC, NB, NA = 64, 224, 224
a(f"; @launch grid=({NC+NB+NA},1,1) block=(256,1,1) lds=81920")
a('.amdgcn_target "amdgcn-amd-amdhsa--gfx950"\n.text')
a(kernel_header(K))
a(f"s_cmp_ge_u32 s2, {NC+NB+NA}\ns_cbranch_scc1 L_end")
if ST: stamp_begin(a)
a(f"s_cmp_ge_u32 s2, {NC+NB}\ns_cbranch_scc1 L_typeA")
a(f"s_cmp_ge_u32 s2, {NC}\ns_cbranch_scc1 L_typeB")
SN = 69; SF = 44
nonce_make(a)
if PC: a(f"s_setprio {PC}")
emit_ln(a, SF, SN, mark=MK)
MK(a, 6)
WC = E('WC', 0)
if WC:
    c0 = 32 if WC == 2 else 0
    per = 12544 // ((64 - c0) // 8); nl = (per + 255) // 256
    a(f"""
    s_cmp_lt_u32 s2, {c0}
    s_cbranch_scc1 L_fin
    s_load_dwordx2 s[62:63], s[0:1], {KA['w2']}
    s_sub_u32 s54, s2, {c0}
    s_lshr_b32 s54, s54, 3
    s_mul_i32 s54, s54, {per*128}
    v_lshlrev_b32 v202, 7, v0
    v_add_u32 v170, s54, v202
    s_waitcnt lgkmcnt(0)
    """)
    for n in range(1, nl): a(f"v_add_u32 v{170+n}, {n*256*128}, v170")
    a.srd(64, 62, SZ['w2'])
    for n in range(nl):
        a(f"buffer_load_dword v{190+n}, v{170+n}, s[64:67], 0 offen")
    a("s_waitcnt vmcnt(0)")
a("s_branch L_fin")
a(f"L_typeB:\ns_sub_u32 s2, s2, {NC}")
if PB: a(f"s_setprio {PB}")
a(f"s_load_dwordx2 s[62:63], s[0:1], {KA['dbg']}")
def xl(a):
    a.srd(SF, 42, 0x10000, WS_FLAG)
    nonce_issue(a, 130)
    a(f"""
    v_and_b32 v141, 31, v2
    v_lshlrev_b32 v141, 3, v141
    s_lshl_b32 s51, s25, 10
    s_lshl_b32 s52, s24, 8
    s_add_u32 s51, s51, s52
    s_add_u32 s51, s51, {FSTAT}
    buffer_load_dwordx2 v[142:143], v141, s[{SF}:{SF+3}], s51 offen sc1
    """)
    if TCH:
        a(f"""
        s_lshl_b32 s53, s25, 2
        s_add_u32 s53, s53, s24
        s_mul_i32 s53, s53, 112
        s_lshl_b32 s54, s26, 3
        s_add_u32 s53, s53, s54
        s_lshl_b32 s53, s53, 10
        v_lshlrev_b32 v144, 7, v2
        buffer_load_dword v145, v144, s[12:15], s53 offen sc1
        """)
def fin(a):
    nonce_finish(a, SN, 130, vm=TCH)
    lab = a.label("gr")
    a(f"""
    v_cmp_ne_u32 vcc, s{SN}, v142
    s_cbranch_vccz {lab}_d
    s_mov_b32 s61, {SPIN}
    {lab}:
    buffer_load_dwordx2 v[142:143], v141, s[{SF}:{SF+3}], s51 offen sc1
    s_sub_u32 s61, s61, 1
    s_cbranch_scc1 {lab}_d
    s_waitcnt vmcnt(0)
    v_cmp_ne_u32 vcc, s{SN}, v142
    s_cbranch_vccnz {lab}
    {lab}_d:
    """)
emit_g1(a, coh="sc1", mark=MK, extra_load=xl, after_loop=fin, prefetch=PF, ext=143)
MK(a, 6)
PROG = E('PROG', 1); EARLYSET = E('EARLYSET', 0); PIPE = E('PIPE', 1)
a("s_lshl_b32 s68, s25, 10\ns_lshl_b32 s34, s26, 6\ns_add_u32 s68, s68, s34")
if not EARLYSET:
    signal(a, SF, "s68", SN, 16)
    MK(a, 7)
    if PB2 != PB: a(f"s_setprio {PB2}")
emit_g2_setup(a)
def bwarm(a):
    a(f"""
    s_lshr_b32 s34, s2, 3
    s_mul_i32 s34, s34, {448*128}
    v_lshlrev_b32 v186, 7, v0
    v_add_u32 v186, s34, v186
    v_add_u32 v187, {192*128}, v186
    buffer_load_dword v188, v186, s[8:11], 0 offen
    buffer_load_dword v189, v187, s[8:11], 0 offen
    """)
BW = E('BW', 0)
def wact(a):
    if BW == 1: bwarm(a)
    if EARLYSET:
        signal(a, SF, "s68", SN, 16)
        MK(a, 7)
        if PB2 != PB: a(f"s_setprio {PB2}")
    a("s_lshr_b32 s34, s26, 1\ns_lshl_b32 s34, s34, 10")
    if PROG:
        lab = a.label("pw")
        a(f"""
        s_mul_i32 s35, s24, 28
        s_lshr_b32 s35, s35, 3
        s_lshl_b32 s35, s35, 6
        s_add_u32 s56, s34, s35
        v_min_u32 v216, 3, v2
        v_lshlrev_b32 v216, 6, v216
        s_mov_b32 s61, {SPIN}
        {lab}:
        buffer_load_dword v217, v216, s[{SF}:{SF+3}], s56 offen sc1
        s_sub_u32 s61, s61, 1
        s_cbranch_scc1 {lab}_d
        s_waitcnt vmcnt(0)
        v_cmp_ne_u32 vcc, s{SN}, v217
        s_and_b32 s55, vcc_lo, 3
        s_cbranch_scc1 {lab}
        {lab}_d:
        """)
    elif PIPE: wait_flags_pipe(a, SF, "s34", 14, 64, SN, 24, 216)
    else: wait_flags(a, SF, "s34", 14, 64, SN, 24, 8)
    MK(a, 8)
if BW == 2: bwarm(a)
emit_g2(a, coh="sc1", wait_act=wact, wait_st=None, mark=lambda a, i: (MK(a, {3: 1, 4: 2, 5: 3, 6: 5, 7: 4, 8: 6, 9: 7}[i]) if (i < 5 or G2M) else None), early=(SF, SN, FCV, SPIN), prog=((SF, SN, 's56', SPIN) if PROG else None))
a(f"s_add_u32 s2, s2, {NC}")
a("s_branch L_fin")
a(f"L_typeA:\ns_sub_u32 s2, s2, {NC+NB}")
if PA: a(f"s_setprio {PA}")
emit_kg_setup(a)
a.srd(32, 48, 1835008, WS_ST); a.srd(56, 48, 1835008, WS_XNT)
emit_xs_zero(a)
AWP = E('AWP', 0)
def warm(a):
    a(f"""
    {'s_branch L_nopf' if E('AW', 1) == 0 else 's_cmp_eq_u32 s24, 0'}
    s_cbranch_scc1 L_nopf
    s_load_dwordx2 s[72:73], s[0:1], {KA['w2']}
    s_lshr_b32 s54, s25, 3
    s_mul_i32 s54, s54, {448*128}
    v_subrev_u32 v202, 64, v0
    v_lshlrev_b32 v202, 7, v202
    s_waitcnt lgkmcnt(0)
    """)
    a.srd(64, 72, SZ['w2'])
    a(f"""
    s_add_u32 s55, s54, {192*128}
    buffer_load_dword v203, v202, s[64:67], s54 offen
    buffer_load_dword v203, v202, s[64:67], s55 offen
    s_add_u32 s55, s54, {384*128}
    v_cmp_gt_u32 vcc, {64+64}, v0
    s_and_saveexec_b64 s[70:71], vcc
    s_cbranch_execz L_nopf2
    buffer_load_dword v203, v202, s[64:67], s55 offen
    L_nopf2:
    s_mov_b64 exec, s[70:71]
    L_nopf:
    """)
MK(a, 3)
if AWP == 2:
    a('s_waitcnt vmcnt(6)')
    warm(a)
emit_kg_channel(a, 0, hook1=((lambda a: a(f's_setprio {PA2}')) if E('PAX', 0) == 1 else None))
MK(a, 4)
if PA2 != PA: a(f"s_setprio {PA2}")
flag_srd(a, SF)
a(f"s_load_dwordx2 s[62:63], s[0:1], {KA['dbg']}\ns_waitcnt vmcnt(0) lgkmcnt(0)")
nonce_issue(a, 200)
if AWP == 5:
    a("s_nop 0")
    warm(a)
def hk1(a):
    a(f"v_lshlrev_b32 v205, 6, v2\ns_mov_b32 s54, {FXN}\nbuffer_load_dword v204, v205, s[{SF}:{SF+3}], s54 offen sc1")
def hk2(a):
    nonce_finish(a, SN, 200)
    lab = a.label("xw")
    a(f"""
    v_cmp_ne_u32 vcc, s{SN}, v204
    s_cbranch_vccz {lab}_d
    s_mov_b32 s61, {SPIN}
    {lab}:
    buffer_load_dword v204, v205, s[{SF}:{SF+3}], s54 offen sc1
    s_sub_u32 s61, s61, 1
    s_cbranch_scc1 {lab}_d
    s_waitcnt vmcnt(0)
    v_cmp_ne_u32 vcc, s{SN}, v204
    s_cbranch_vccnz {lab}
    {lab}_d:
    """)
    emit_xs_issue(a, 208, coh="sc1")
    if AWP == 3: warm(a)
if E('PAY', -1) >= 0: hk1_ = hk1; hk1 = lambda a: (hk1_(a), a(f"s_setprio {E('PAY', -1)}"))
emit_kg_channel(a, 1, wait=False, hook1=hk1, hook2=hk2)
MK(a, 5)
if PA3 != PA2: a(f"s_setprio {PA3}")
emit_xs_write(a, 208)
MK(a, 6)
def warm2(a, k0, k1, lab):
    n = 16 * (k1 - k0)
    a(f"""
    s_load_dwordx2 s[72:73], s[0:1], {KA['w2']}
    s_lshr_b32 s54, s25, 3
    s_mul_i32 s55, s54, 37
    s_lshr_b32 s55, s55, 8
    s_mul_i32 s64, s55, 7
    s_sub_u32 s54, s54, s64
    s_mul_i32 s55, s55, {3136*128}
    s_mul_i32 s54, s54, {n*128}
    s_add_u32 s54, s54, s55
    s_add_u32 s54, s54, {112*k0*128}
    s_waitcnt lgkmcnt(0)
    """)
    a.srd(64, 72, SZ['w2'])
    for r in range((n + 255) // 256):
        a(f"""
        v_add_u32 v{202+2*r}, {256*r}, v0
        v_min_u32 v{202+2*r}, {n-1}, v{202+2*r}
        v_lshlrev_b32 v{202+2*r}, 7, v{202+2*r}
        v_add_u32 v{202+2*r}, s54, v{202+2*r}
        buffer_load_dword v{203+2*r}, v{202+2*r}, s[64:67], 0 offen
        """)
SPL = E('SPL', 0); SK0 = E('SK0', 0)
if SPL: warm2(a, SK0, SPL, "w1")
elif AWP == 0: warm(a)
a("s_waitcnt lgkmcnt(0)\ns_barrier")
MK(a, 7)
SPH = E('SPH', -1); SPM = E('SPM', 28)
emit_cv(a, coh="sc1", rr_hook=(lambda a, rr: warm2(a, SPL, SPM, "w2") if (SPL and rr == SPH) else None))
MK(a, 8)
a(f"s_lshl_b32 s54, s25, 6\ns_add_u32 s54, s54, {FCV}")
signal(a, SF, "s54", SN, 88)
if SPL and (SPH < 0 or SPM < 28):
    warm2(a, SPL if SPH < 0 else SPM, 28, "w2")
    a("s_waitcnt vmcnt(0)")
a(f"s_add_u32 s2, s2, {NC+NB}")
a("L_fin:")
if ST: stamp_end(a, 0)
a("L_end:\ns_endpgm")
a('.section .rodata,"a"')
a(kernel_desc(K, 256 if ST else 224))
open(sys.argv[1], "w").write(hdr + a.text())
```

```python
import sys, os
from asmlib import *
from role_g1 import emit_g1
from role_kc import *
from role_g2 import *
from role_ln import *
from sync import *
ST = len(sys.argv) > 2 and sys.argv[2] == "1"
E = lambda k, d: int(os.environ.get(k, d))
TCH = E('TCH', 0); G2M = E('G2M', 0); PF = E('PF', 0); PA = E('PA', 3); PA2 = E('PA2', PA); PA3 = E('PA3', PA2); PB = E('PB', 0); PB2 = E('PB2', PB); PC = E('PC', 3)
MK = stamp_mark if ST else (lambda a, i: None)
K = NAME + "_kernel"
hdr = open("cdna_kernels/" + NAME + ".s.ref").read().split("; Override")[0]
a = Asm()
NC, NB, NA = 64, 224, 224
a(f"; @launch grid=({NC+NB+NA},1,1) block=(256,1,1) lds=81920")
a('.amdgcn_target "amdgcn-amd-amdhsa--gfx950"\n.text')
a(kernel_header(K))
a(f"s_cmp_ge_u32 s2, {NC+NB+NA}\ns_cbranch_scc1 L_end")
if ST: stamp_begin(a)
a(f"s_cmp_ge_u32 s2, {NC+NB}\ns_cbranch_scc1 L_typeA")
a(f"s_cmp_ge_u32 s2, {NC}\ns_cbranch_scc1 L_typeB")
SN = 69; SF = 44
nonce_make(a)
if PC: a(f"s_setprio {PC}")
emit_ln(a, SF, SN, mark=MK)
MK(a, 6)
WC = E('WC', 0)
if WC:
    c0 = 32 if WC == 2 else 0
    per = 12544 // ((64 - c0) // 8); nl = (per + 255) // 256
    a(f"""
    s_cmp_lt_u32 s2, {c0}
    s_cbranch_scc1 L_fin
    s_load_dwordx2 s[62:63], s[0:1], {KA['w2']}
    s_sub_u32 s54, s2, {c0}
    s_lshr_b32 s54, s54, 3
    s_mul_i32 s54, s54, {per*128}
    v_lshlrev_b32 v202, 7, v0
    v_add_u32 v170, s54, v202
    s_waitcnt lgkmcnt(0)
    """)
    for n in range(1, nl): a(f"v_add_u32 v{170+n}, {n*256*128}, v170")
    a.srd(64, 62, SZ['w2'])
    for n in range(nl):
        a(f"buffer_load_dword v{190+n}, v{170+n}, s[64:67], 0 offen")
    a("s_waitcnt vmcnt(0)")
a("s_branch L_fin")
a(f"L_typeB:\ns_sub_u32 s2, s2, {NC}")
if PB: a(f"s_setprio {PB}")
a(f"s_load_dwordx2 s[62:63], s[0:1], {KA['dbg']}")
def xl(a):
    a.srd(SF, 42, 0x10000, WS_FLAG)
    nonce_issue(a, 130)
    a(f"""
    v_and_b32 v141, 31, v2
    v_lshlrev_b32 v141, 3, v141
    s_lshl_b32 s51, s25, 10
    s_lshl_b32 s52, s24, 8
    s_add_u32 s51, s51, s52
    s_add_u32 s51, s51, {FSTAT}
    buffer_load_dwordx2 v[142:143], v141, s[{SF}:{SF+3}], s51 offen sc1
    """)
    if TCH:
        a(f"""
        s_lshl_b32 s53, s25, 2
        s_add_u32 s53, s53, s24
        s_mul_i32 s53, s53, 112
        s_lshl_b32 s54, s26, 3
        s_add_u32 s53, s53, s54
        s_lshl_b32 s53, s53, 10
        v_lshlrev_b32 v144, 7, v2
        buffer_load_dword v145, v144, s[12:15], s53 offen sc1
        """)
def fin(a):
    nonce_finish(a, SN, 130, vm=TCH)
    lab = a.label("gr")
    a(f"""
    v_cmp_ne_u32 vcc, s{SN}, v142
    s_cbranch_vccz {lab}_d
    s_mov_b32 s61, {SPIN}
    {lab}:
    buffer_load_dwordx2 v[142:143], v141, s[{SF}:{SF+3}], s51 offen sc1
    s_sub_u32 s61, s61, 1
    s_cbranch_scc1 {lab}_d
    s_waitcnt vmcnt(0)
    v_cmp_ne_u32 vcc, s{SN}, v142
    s_cbranch_vccnz {lab}
    {lab}_d:
    """)
emit_g1(a, coh="sc1", mark=MK, extra_load=xl, after_loop=fin, prefetch=PF, ext=143)
MK(a, 6)
PROG = E('PROG', 1); EARLYSET = E('EARLYSET', 0); PIPE = E('PIPE', 1)
a("s_lshl_b32 s68, s25, 10\ns_lshl_b32 s34, s26, 6\ns_add_u32 s68, s68, s34")
if not EARLYSET:
    signal(a, SF, "s68", SN, 16)
    MK(a, 7)
    if PB2 != PB: a(f"s_setprio {PB2}")
emit_g2_setup(a)
def bwarm(a):
    a(f"""
    s_lshr_b32 s34, s2, 3
    s_mul_i32 s34, s34, {448*128}
    v_lshlrev_b32 v186, 7, v0
    v_add_u32 v186, s34, v186
    v_add_u32 v187, {192*128}, v186
    buffer_load_dword v188, v186, s[8:11], 0 offen
    buffer_load_dword v189, v187, s[8:11], 0 offen
    """)
BW = E('BW', 0)
def wact(a):
    if BW == 1: bwarm(a)
    if EARLYSET:
        signal(a, SF, "s68", SN, 16)
        MK(a, 7)
        if PB2 != PB: a(f"s_setprio {PB2}")
    a("s_lshr_b32 s34, s26, 1\ns_lshl_b32 s34, s34, 10")
    if PROG:
        lab = a.label("pw")
        a(f"""
        s_mul_i32 s35, s24, 28
        s_lshr_b32 s35, s35, 3
        s_lshl_b32 s35, s35, 6
        s_add_u32 s56, s34, s35
        v_min_u32 v216, 3, v2
        v_lshlrev_b32 v216, 6, v216
        s_mov_b32 s61, {SPIN}
        {lab}:
        buffer_load_dword v217, v216, s[{SF}:{SF+3}], s56 offen sc1
        s_sub_u32 s61, s61, 1
        s_cbranch_scc1 {lab}_d
        s_waitcnt vmcnt(0)
        v_cmp_ne_u32 vcc, s{SN}, v217
        s_and_b32 s55, vcc_lo, 3
        s_cbranch_scc1 {lab}
        {lab}_d:
        """)
    elif PIPE: wait_flags_pipe(a, SF, "s34", 14, 64, SN, 24, 216)
    else: wait_flags(a, SF, "s34", 14, 64, SN, 24, 8)
    MK(a, 8)
if BW == 2: bwarm(a)
emit_g2(a, coh="sc1", wait_act=wact, wait_st=None, mark=lambda a, i: (MK(a, {3: 1, 4: 2, 5: 3, 6: 5, 7: 4, 8: 6, 9: 7}[i]) if (i < 5 or G2M) else None), early=(SF, SN, FCV, SPIN), prog=((SF, SN, 's56', SPIN) if PROG else None))
a(f"s_add_u32 s2, s2, {NC}")
a("s_branch L_fin")
a(f"L_typeA:\ns_sub_u32 s2, s2, {NC+NB}")
if PA: a(f"s_setprio {PA}")
emit_kg_setup(a)
a.srd(32, 48, 1835008, WS_ST); a.srd(56, 48, 1835008, WS_XNT)
emit_xs_zero(a)
AWP = E('AWP', 0)
def warm2(a, k0, k1, lab):
    n = 16 * (k1 - k0)
    a(f"""
    s_load_dwordx2 s[72:73], s[0:1], {KA['w2']}
    s_lshr_b32 s54, s25, 3
    s_mul_i32 s55, s54, 37
    s_lshr_b32 s55, s55, 8
    s_mul_i32 s64, s55, 7
    s_sub_u32 s54, s54, s64
    s_mul_i32 s55, s55, {3136*128}
    s_mul_i32 s54, s54, {n*128}
    s_add_u32 s54, s54, s55
    s_add_u32 s54, s54, {112*k0*128}
    s_waitcnt lgkmcnt(0)
    """)
    a.srd(64, 72, SZ['w2'])
    for r in range((n + 255) // 256):
        a(f"""
        v_add_u32 v{202+2*r}, {256*r}, v0
        v_min_u32 v{202+2*r}, {n-1}, v{202+2*r}
        v_lshlrev_b32 v{202+2*r}, 7, v{202+2*r}
        v_add_u32 v{202+2*r}, s54, v{202+2*r}
        buffer_load_dword v{203+2*r}, v{202+2*r}, s[64:67], 0 offen
        """)
SPL = E('SPL', 0); SK0 = E('SK0', 0); SPP = E('SPP', 0)
def warm(a):
    a(f"""
    {'s_branch L_nopf' if E('AW', 1) == 0 else 's_cmp_eq_u32 s24, 0'}
    s_cbranch_scc1 L_nopf
    s_load_dwordx2 s[72:73], s[0:1], {KA['w2']}
    s_lshr_b32 s54, s25, 3
    s_mul_i32 s54, s54, {448*128}
    v_subrev_u32 v202, 64, v0
    v_lshlrev_b32 v202, 7, v202
    s_waitcnt lgkmcnt(0)
    """)
    a.srd(64, 72, SZ['w2'])
    a(f"""
    s_add_u32 s55, s54, {192*128}
    buffer_load_dword v203, v202, s[64:67], s54 offen
    buffer_load_dword v203, v202, s[64:67], s55 offen
    s_add_u32 s55, s54, {384*128}
    v_cmp_gt_u32 vcc, {64+64}, v0
    s_and_saveexec_b64 s[70:71], vcc
    s_cbranch_execz L_nopf2
    buffer_load_dword v203, v202, s[64:67], s55 offen
    L_nopf2:
    s_mov_b64 exec, s[70:71]
    L_nopf:
    """)
MK(a, 3)
if AWP == 2:
    a('s_waitcnt vmcnt(6)')
    warm(a)
emit_kg_channel(a, 0, hook1=((lambda a: a(f's_setprio {PA2}')) if E('PAX', 0) == 1 else None))
MK(a, 4)
if PA2 != PA: a(f"s_setprio {PA2}")
flag_srd(a, SF)
a(f"s_load_dwordx2 s[62:63], s[0:1], {KA['dbg']}\ns_waitcnt vmcnt(0) lgkmcnt(0)")
nonce_issue(a, 200)
if AWP == 5:
    a("s_nop 0")
    warm(a)
def hk1(a):
    a(f"v_lshlrev_b32 v205, 6, v2\ns_mov_b32 s54, {FXN}\nbuffer_load_dword v204, v205, s[{SF}:{SF+3}], s54 offen sc1")
def hk2(a):
    nonce_finish(a, SN, 200)
    lab = a.label("xw")
    a(f"""
    v_cmp_ne_u32 vcc, s{SN}, v204
    s_cbranch_vccz {lab}_d
    s_mov_b32 s61, {SPIN}
    {lab}:
    buffer_load_dword v204, v205, s[{SF}:{SF+3}], s54 offen sc1
    s_sub_u32 s61, s61, 1
    s_cbranch_scc1 {lab}_d
    s_waitcnt vmcnt(0)
    v_cmp_ne_u32 vcc, s{SN}, v204
    s_cbranch_vccnz {lab}
    {lab}_d:
    """)
    emit_xs_issue(a, 208, coh="sc1")
    if AWP == 3: warm(a)
    if SPL and SPP == 3: warm2(a, SK0, SPL, 'w1')
if E('PAY', -1) >= 0: hk1_ = hk1; hk1 = lambda a: (hk1_(a), a(f"s_setprio {E('PAY', -1)}"))
emit_kg_channel(a, 1, wait=False, hook1=hk1, hook2=hk2)
MK(a, 5)
if PA3 != PA2: a(f"s_setprio {PA3}")
emit_xs_write(a, 208)
MK(a, 6)
if SPL and SPP == 0: warm2(a, SK0, SPL, "w1")
elif SPL: pass
elif AWP == 0: warm(a)
a("s_waitcnt lgkmcnt(0)\ns_barrier")
MK(a, 7)
SPH = E('SPH', -1); SPM = E('SPM', 28)
emit_cv(a, coh="sc1", rr_hook=(lambda a, rr: warm2(a, SPL, SPM, "w2") if (SPL and rr == SPH) else None))
MK(a, 8)
a(f"s_lshl_b32 s54, s25, 6\ns_add_u32 s54, s54, {FCV}")
signal(a, SF, "s54", SN, 88)
if SPL and (SPH < 0 or SPM < 28):
    warm2(a, SPL if SPH < 0 else SPM, 28, "w2")
    a("s_waitcnt vmcnt(0)")
a(f"s_add_u32 s2, s2, {NC+NB}")
a("L_fin:")
if ST: stamp_end(a, 0)
a("L_end:\ns_endpgm")
a('.section .rodata,"a"')
a(kernel_desc(K, 256 if ST else 224))
open(sys.argv[1], "w").write(hdr + a.text())
```
